```python
import torch

def _softmax(x, axis=-1):
    return torch.softmax(x, dim=axis)
def _gelu(x):
    return torch.nn.functional.gelu(x, approximate="tanh")
def _silu(x):
    return torch.nn.functional.silu(x)
def _sigmoid(x):
    return torch.sigmoid(x)
def _layernorm(x, axis=-1, eps=1e-5):
    m = x.mean(dim=axis, keepdim=True)
    v = x.var(dim=axis, keepdim=True, unbiased=False)
    return (x - m) / torch.sqrt(v + eps)
def _scatter_add(tgt, idx, src, axis=0):
    return tgt.clone().index_add_(axis, idx, src)
def _segment_sum(src, seg, n):
    out = torch.zeros((n,) + src.shape[1:], dtype=src.dtype)
    return out.index_add_(0, seg, src)
def _pad(x, pw):
    flat = tuple(v for pair in reversed(pw) for v in pair)
    return torch.nn.functional.pad(x, flat)

kernel_name = 'sequential_preLN__mha_block__geglu_ffn__prompt'

def setup_inputs():

    _w = (lambda a: (lambda t: t.to(torch.bfloat16) if t.is_floating_point() else t)(torch.as_tensor(a)))
    def _A_setup():
        B, S, D, H = 1, 2048, 640, 32
        return {
            "x": _w((lambda *s: torch.randn(*s, dtype=torch.bfloat16) * 0.05)(B, S, D)),
            "wqkv": _w((lambda *s: torch.randn(*s, dtype=torch.bfloat16) * 0.05)(D, 3 * D)),
            "wo": _w((lambda *s: torch.randn(*s, dtype=torch.bfloat16) * 0.05)(D, D)),
        }
    _A_in = _A_setup()

    def _B_setup():
        B, S, D, F = 1, 2048, 640, 1536
        return {
            "x": _w((lambda *s: torch.randn(*s, dtype=torch.bfloat16) * 0.05)(B, S, D)),
            "w_gate": _w((lambda *s: torch.randn(*s, dtype=torch.bfloat16) * 0.05)(D, F)),
            "w_up": _w((lambda *s: torch.randn(*s, dtype=torch.bfloat16) * 0.05)(D, F)),
            "w_down": _w((lambda *s: torch.randn(*s, dtype=torch.bfloat16) * 0.05)(F, D)),
        }
    _B_in = _B_setup()

    return {
        "A_x": _A_in["x"],
        "A_wqkv": _A_in["wqkv"],
        "A_wo": _A_in["wo"],
        "B_x": _B_in["x"],
        "B_w_gate": _B_in["w_gate"],
        "B_w_up": _B_in["w_up"],
        "B_w_down": _B_in["w_down"],
    }

def reference(A_x, A_wqkv, A_wo, B_x, B_w_gate, B_w_up, B_w_down):
    def _A_ref(x, wqkv, wo):
        B, S, D = x.shape
        H = 32
        Dh = D // H
        qkv = (lambda x, *d: x.permute(*d))((x @ wqkv).reshape(B, S, 3, H, Dh), 2, 0, 3, 1, 4)
        q, k, v = qkv[0], qkv[1], qkv[2]
        scores = torch.einsum("bhqd,bhkd->bhqk", q, k) * (Dh ** -0.5)
        p = _softmax(scores, axis=-1)
        o = torch.einsum("bhqk,bhkd->bhqd", p, v)
        return (lambda x, *d: x.permute(*d))(o, 0, 2, 1, 3).reshape(B, S, D) @ wo

    def _B_ref(x, w_gate, w_up, w_down):
        return (_gelu(x @ w_gate) * (x @ w_up)) @ w_down

    x = A_x
    h = x + _A_ref(_layernorm(x, axis=-1), A_wqkv, A_wo)
    h2 = h + _B_ref(_layernorm(h, axis=-1), B_w_gate, B_w_up, B_w_down)
    return h2
```

```python
import re

TRANS = ('v_exp_f32','v_log_f32','v_rcp_f32','v_rsq_f32','v_sqrt_f32','v_sin_f32','v_cos_f32','v_rcp_iflag_f32',
         'v_exp_f16','v_rcp_f16','v_rsq_f16')

def parse_reg(tok):
    tok = tok.strip()
    neg = tok.lstrip('-')
    if neg.startswith('abs(') and neg.endswith(')'):
        neg = neg[4:-1]
    if neg.startswith('|') and neg.endswith('|'):
        neg = neg[1:-1]
    tok = neg
    m = re.fullmatch(r'([vsa])(\d+)', tok)
    if m: return [(m.group(1), int(m.group(2)))]
    m = re.fullmatch(r'([vsa])\[(\d+):(\d+)\]', tok)
    if m: return [(m.group(1), i) for i in range(int(m.group(2)), int(m.group(3)) + 1)]
    if tok == 'vcc': return [('s', 106), ('s', 107)]
    if tok == 'vcc_lo': return [('s', 106)]
    if tok == 'vcc_hi': return [('s', 107)]
    if tok == 'exec': return [('s', 126), ('s', 127)]
    if tok == 'exec_lo': return [('s', 126)]
    if tok == 'exec_hi': return [('s', 127)]
    if tok == 'm0': return [('s', 124)]
    if tok == 'scc': return []
    return []

def split_ops(s):
    out = []; depth = 0; cur = ''
    for ch in s:
        if ch in '[(': depth += 1
        if ch in '])': depth -= 1
        if ch == ',' and depth == 0:
            out.append(cur.strip()); cur = ''
        else:
            cur += ch
    if cur.strip(): out.append(cur.strip())
    return out

class Ins:
    __slots__ = ('text','mn','ops','kind','dst','src','srcA','srcB','srcC','passes','mods','wr_sgpr_valu','lds_dma','storedata','wide')
    def __init__(self, text):
        self.text = text
        t = text.split(';')[0].split('//')[0].strip()
        parts = t.split(None, 1)
        self.mn = parts[0]
        rest = parts[1] if len(parts) > 1 else ''
        ops = split_ops(rest)
        mods = ''
        if ops:
            last = ops[-1].split(None, 1)
            if len(last) > 1 and not last[0].endswith('('):
                ops[-1] = last[0]; mods = last[1]
        self.ops = ops; self.mods = mods
        self.dst = []; self.src = []; self.srcA = []; self.srcB = []; self.srcC = []
        self.passes = 0; self.lds_dma = False; self.storedata = []; self.wide = False
        mn = self.mn
        R = parse_reg
        if mn.startswith('v_mfma'):
            self.kind = 'mfma'
            self.dst = R(ops[0]); self.srcA = R(ops[1]); self.srcB = R(ops[2]); self.srcC = R(ops[3])
            self.src = self.srcA + self.srcB + self.srcC
            if '32x32x16' in mn or '32x32x8' in mn: self.passes = 8
            elif '16x16x32' in mn or '16x16x16' in mn: self.passes = 4
            else: raise ValueError('unknown mfma ' + mn)
        elif mn.startswith('v_'):
            self.kind = 'valu'
            if mn.startswith('v_cmp'):
                self.dst = R(ops[0]); srcs = ops[1:]
            elif mn.startswith('v_permlane32_swap') or mn.startswith('v_permlane16_swap') or mn.startswith('v_swap'):
                self.dst = R(ops[0]) + R(ops[1]); srcs = ops
            elif mn.startswith(('v_add_co', 'v_sub_co', 'v_addc_co', 'v_subb_co', 'v_subrev_co')):
                self.dst = R(ops[0]) + R(ops[1]); srcs = ops[2:]
            else:
                self.dst = R(ops[0]); srcs = ops[1:]
                if mn.startswith(('v_fmac', 'v_dot2c', 'v_mac', 'v_pk_fmac', 'v_writelane')) or 'UNUSED_PRESERVE' in mods:
                    srcs = ops
            for s in srcs: self.src += R(s)
            if mn.startswith('v_cndmask') and len(ops) == 3: self.src += R('vcc')
        elif mn.startswith('ds_'):
            self.kind = 'ds'
            if mn.startswith(('ds_read', 'ds_bpermute', 'ds_permute', 'ds_swizzle')):
                self.dst = R(ops[0])
                for s in ops[1:]: self.src += R(s)
            else:
                for s in ops: self.src += R(s)
        elif mn.startswith(('buffer_', 'global_')):
            self.kind = 'vmem'
            allm = ' ' + mods + ' '
            if mn.startswith('buffer_load'):
                if ' lds ' in allm:
                    self.lds_dma = True
                    for s in ops: self.src += R(s)
                else:
                    self.dst = R(ops[0])
                    for s in ops[1:]: self.src += R(s)
                    if 'd16' in mn: self.src += self.dst
            elif mn.startswith('global_load_lds'):
                self.lds_dma = True
                for s in ops: self.src += R(s)
            elif mn.startswith('global_load'):
                self.dst = R(ops[0])
                for s in ops[1:]: self.src += R(s)
                if 'd16' in mn: self.src += self.dst
            elif mn.startswith('buffer_store'):
                self.storedata = R(ops[0])
                for s in ops: self.src += R(s)
                self.wide = 'x4' in mn or 'x3' in mn
            elif mn.startswith('global_store'):
                self.storedata = R(ops[1])
                for s in ops: self.src += R(s)
                self.wide = 'x4' in mn or 'x3' in mn
            elif 'atomic' in mn:
                for s in ops: self.src += R(s)
                if ' sc0 ' in allm: self.dst = R(ops[0])
            else:
                for s in ops: self.src += R(s)
        elif mn.startswith('s_'):
            self.kind = 'salu'
            if mn in ('s_waitcnt', 's_barrier', 's_nop', 's_endpgm', 's_branch', 's_setprio', 's_sleep') or mn.startswith(('s_cbranch', 's_cmp', 's_bitcmp')):
                for s in ops: self.src += R(s)
            else:
                self.dst = R(ops[0])
                for s in ops[1:]: self.src += R(s)
                if 'saveexec' in mn:
                    self.dst += R('exec')
        else:
            raise ValueError('unknown instruction: ' + text)

    def states(self):
        if self.mn == 's_nop':
            return int(self.ops[0], 0) + 1
        return 1

class HazardState:
    def __init__(self):
        self.t = 0
        self.valu_w = {}
        self.trans_w = {}
        self.mfma_w = {}
        self.mfma_c = {}
        self.valu_sw = {}
        self.store_r = {}
        self.dot_w = {}
        self.m0_w = -100
        self.exec_valu_w = -100
    def copy(self):
        h = HazardState(); h.t = self.t
        for k in ('valu_w','trans_w','mfma_w','mfma_c','valu_sw','store_r','dot_w'):
            setattr(h, k, dict(getattr(self, k)))
        h.m0_w = self.m0_w; h.exec_valu_w = self.exec_valu_w
        return h

def need(ins, st):
    t = st.t
    req = t
    def after(tp, n):
        nonlocal req
        req = max(req, tp + n + 1)
    isv = lambda r: r[0] in 'va'
    for r in ins.src + ins.dst:
        if r in st.dot_w:
            tp, mn = st.dot_w[r]
            if not (mn == ins.mn and r in ins.dst and ins.mn.startswith('v_dot2c')):
                after(tp, 3)
    if ins.kind == 'mfma':
        for r in ins.src:
            if r in st.valu_w: after(st.valu_w[r], 2)
        dset = tuple(ins.srcC)
        for r in ins.srcA + ins.srcB:
            if r in st.mfma_w:
                tp, p, _ = st.mfma_w[r]; after(tp, {2:5,4:8,8:12,16:20}[p])
        for r in ins.srcC:
            if r in st.mfma_w:
                tp, p, d = st.mfma_w[r]
                if d == dset and p == ins.passes: after(tp, 2 if p == 2 else 0)
                else: after(tp, {2:4,4:6,8:10,16:18}[p])
        for r in ins.dst:
            if r in st.mfma_w and r not in ins.srcC:
                tp, p, d = st.mfma_w[r]; after(tp, {2:5,4:8,8:12,16:20}[p])
        after(st.exec_valu_w, 4)
    else:
        vregs_rw = [r for r in ins.src + ins.dst if isv(r)]
        for r in vregs_rw:
            if r in st.mfma_w:
                tp, p, _ = st.mfma_w[r]; after(tp, {2:5,4:8,8:12,16:20}[p])
        if ins.kind == 'valu':
            for r in ins.dst:
                if r in st.mfma_c:
                    tp, p = st.mfma_c[r]; after(tp, {2:1,4:3,8:7,16:15}[p])
                if r in st.store_r: after(st.store_r[r], 2)
            if ins.mn not in TRANS:
                for r in ins.src:
                    if r in st.trans_w: after(st.trans_w[r], 1)
            for r in ins.src:
                if r[0] == 's' and r in st.valu_sw:
                    after(st.valu_sw[r], 4 if ins.mn.startswith(('v_readlane', 'v_writelane')) else 2)
            if ins.mn.startswith(('v_readfirstlane', 'v_readlane')):
                for r in ins.src:
                    if r in st.valu_w: after(st.valu_w[r], 1)
                after(st.exec_valu_w, 4)
            if ins.mn.startswith('v_permlane') or 'dpp' in ins.mn or 'row_' in ins.mods or 'quad_perm' in ins.mods:
                for r in ins.src:
                    if r in st.valu_w: after(st.valu_w[r], 2)
                after(st.exec_valu_w, 5)
        elif ins.kind in ('vmem', 'ds'):
            for r in ins.src:
                if r[0] == 's' and r in st.valu_sw: after(st.valu_sw[r], 5)
                if r in st.trans_w: after(st.trans_w[r], 1)
            for r in ins.dst:
                if r in st.mfma_c:
                    tp, p = st.mfma_c[r]; after(tp, {2:1,4:3,8:7,16:15}[p])
                if r in st.store_r: after(st.store_r[r], 1)
            if ins.lds_dma: after(st.m0_w, 1)
        elif ins.kind == 'salu':
            for r in ins.src:
                if r in st.valu_sw: after(st.valu_sw[r], 3)
            if ins.mn.startswith('s_cbranch_vcc') or ins.mn.startswith('s_cbranch_exec'):
                for r in [('s',106),('s',107),('s',126),('s',127)]:
                    if r in st.valu_sw: after(st.valu_sw[r], 5)
    return req

def commit(ins, st, t):
    st.t = t + ins.states()
    tt = st.t - 1
    if ins.kind == 'mfma':
        d = tuple(ins.dst)
        for r in ins.dst:
            st.mfma_w[r] = (t, ins.passes, d); st.valu_w.pop(r, None); st.trans_w.pop(r, None)
        for r in ins.srcC: st.mfma_c[r] = (t, ins.passes)
    elif ins.kind == 'valu':
        for r in ins.dst:
            if r[0] == 's':
                st.valu_sw[r] = t
                if r in (('s',126),('s',127)): st.exec_valu_w = t
            else:
                st.valu_w[r] = t; st.mfma_w.pop(r, None)
                if ins.mn.startswith('v_dot'): st.dot_w[r] = (t, ins.mn)
                else: st.dot_w.pop(r, None)
                if ins.mn in TRANS: st.trans_w[r] = t
                else: st.trans_w.pop(r, None)
    elif ins.kind in ('vmem', 'ds'):
        for r in ins.dst:
            st.mfma_w.pop(r, None); st.valu_w.pop(r, None); st.trans_w.pop(r, None)
        if ins.wide:
            for r in ins.storedata: st.store_r[r] = t
    elif ins.kind == 'salu':
        for r in ins.dst:
            st.valu_sw.pop(r, None)
            if r == ('s',124): st.m0_w = t

class Asm:
    def __init__(self):
        self.items = []
        self.nops = 0
        self.drop = None
    def __call__(self, text):
        for line in text.split('\n'):
            l = line.strip()
            if not l: continue
            if l.startswith(';') or l.startswith('.') or l.endswith(':'):
                self.items.append(l)
            else:
                if self.drop and self.drop(l): continue
                self.items.append(Ins(l))
    def label(self, name): self.items.append(name + ':')
    def comment(self, c): self.items.append('; ' + c)

    def finalize(self, verbose=False):
        labels = {it[:-1]: i for i, it in enumerate(self.items) if isinstance(it, str) and it.endswith(':') and not it.startswith(';')}
        extra = {}
        pend = []
        def scan(start, st, limit=None):
            i = start; n = 0
            while i < len(self.items):
                it = self.items[i]
                if isinstance(it, Ins):
                    t = st.t + extra.get(i, 0)
                    st.t = t
                    req = need(it, st)
                    if req > t:
                        extra[i] = extra.get(i, 0) + (req - t); t = req
                    commit(it, st, t)
                    n += 1
                    if it.mn.startswith(('s_cbranch', 's_branch')):
                        tgt = it.ops[0]
                        assert tgt in labels, tgt
                        pend.append((labels[tgt], st.copy(), i))
                    if it.mn in ('s_branch', 's_endpgm'):
                        if limit is not None: return
                        st = HazardState()
                    if limit is not None and n >= limit: return
                i += 1
        scan(0, HazardState())
        done = set()
        while pend:
            tgt, st, frm = pend.pop()
            if (tgt, frm) in done: continue
            done.add((tgt, frm))
            scan(tgt, st, limit=24)
        out = []
        for i, it in enumerate(self.items):
            if isinstance(it, Ins):
                e = extra.get(i, 0)
                self.nops += e
                while e > 0:
                    k = min(e, 16)
                    out.append(f'  s_nop {k-1}')
                    e -= k
                out.append('  ' + it.text)
            else:
                out.append(it)
        return '\n'.join(out) + '\n'
```

```python
from asmlib import *

WS_Q   = 0x0000000; SZ_Q   = 32*64*1280
WS_KV  = WS_Q + SZ_Q; SZ_KV = 32*163840
WS_O   = WS_KV + SZ_KV; SZ_O = 128*20*1024
WS_H   = WS_O + SZ_O; SZ_H = 64*40*1024
WS_ACT = WS_H + SZ_H; SZ_ACT = 128*48*1024
WS_WOP = WS_ACT + SZ_ACT; SZ_WOP = 800*1024
WS_WDP = WS_WOP + SZ_WOP; SZ_WDP = 1920*1024
WS_WGU = WS_WDP + SZ_WDP; SZ_WGU = 3840*1024
WS_ST  = WS_WGU + SZ_WGU; SZ_ST = 2048*8*8
WS_CWP = WS_ST + SZ_ST; SZ_CWP = 3072*8*4
WS_CW  = WS_CWP + SZ_CWP; SZ_CW = 3072*4
WS_END = WS_CW + SZ_CW

KA_X, KA_WQKV, KA_WO, KA_BX, KA_WG, KA_WU, KA_WD, KA_OUT, KA_DBG, KA_WS = [8*i for i in range(10)]

def srd(a, s, ptr, size, off=0):
    if off:
        a(f's_add_u32 s{s}, s{ptr}, {off}')
        a(f's_addc_u32 s{s+1}, s{ptr+1}, 0')
    else:
        a(f's_mov_b32 s{s}, s{ptr}')
        a(f's_mov_b32 s{s+1}, s{ptr+1}')
    a(f's_mov_b32 s{s+2}, {size}')
    a(f's_mov_b32 s{s+3}, 0x20000')

def kernel_header(name):
    return f""".globl {name}
.p2align 8
.type {name},@function
{name}:
"""

def kernel_desc(name, nvgpr, nsgpr=102, accum=None):
    acc = accum if accum is not None else ((nvgpr + 3)//4)*4
    return f""".p2align 6
.amdhsa_kernel {name}
  .amdhsa_next_free_vgpr {nvgpr}
  .amdhsa_next_free_sgpr {nsgpr}
  .amdhsa_accum_offset {acc}
  .amdhsa_group_segment_fixed_size 0
  .amdhsa_kernarg_size 80
  .amdhsa_user_sgpr_count 2
  .amdhsa_user_sgpr_kernarg_segment_ptr 1
  .amdhsa_system_sgpr_workgroup_id_x 1
  .amdhsa_float_denorm_mode_32 3
.end_amdhsa_kernel
"""

def magic(d):
    return -(-(1 << 32)//d)

def sdiv(a, q, x, d, tmp):
    a(f's_mov_b32 s{tmp}, {magic(d)}')
    a(f's_mul_hi_u32 s{q}, s{x}, s{tmp}')

import os
PROFILE = int(os.environ.get('PROFILE', '0'))
WS_PROF = 0x2000000
PROF_S0 = 72
def stamp(a, i):
    if not PROFILE: return
    a(f's_memtime s[{PROF_S0+2*i}:{PROF_S0+2*i+1}]')
    a('s_waitcnt lgkmcnt(0)')
def stamp_flush(a, kidx, n, nwaves, ws_hi_reload=True):
    if not PROFILE: return
    a('s_load_dwordx2 s[96:97], s[0:1], 72')
    a('s_mov_b64 exec, -1')
    a('v_lshrrev_b32 v2, 6, v0')
    a('v_and_b32 v3, 63, v0')
    a('s_lshl_b32 s98, s2, 4')
    a('v_add_u32 v2, s98, v2')
    a('v_lshlrev_b32 v2, 6, v2')
    a(f'v_add_u32 v2, {WS_PROF + kidx*0x80000}, v2')
    a('v_cmp_eq_u32 vcc, 0, v3')
    a('s_waitcnt lgkmcnt(0)')
    a('s_and_saveexec_b64 s[98:99], vcc')
    for i in range(n):
        a(f'v_mov_b32 v3, s{PROF_S0+2*i}')
        a(f'global_store_dword v2, v3, s[96:97] offset:{4*i}')

EXP = os.environ.get('EXP', '')
```

```python
from common import *
import math, struct

def f32hex(x): return '0x%08x' % struct.unpack('<I', struct.pack('<f', x))[0]
QSCALE = 1.4426950408889634 * (20 ** -0.5)

WS_ST1 = WS_END; SZ_ST1 = 2048*8
WS_CWQ = WS_ST1 + SZ_ST1; SZ_CWQ = 8*1920*4
WS_CWP2 = WS_CWQ + SZ_CWQ; SZ_CWP2 = 3072*20*4
WS_CNT = (WS_CWP2 + SZ_CWP2 + 255)//256*256; SZ_CNT = 128*256
C_P1, C2, C3, C4, CPK = 0, 8, 72, 88, 104
WS_ST2 = WS_CNT + SZ_CNT; SZ_ST2 = 2048*16*8
WS_TOT = WS_ST2 + SZ_ST2

sW = 3
P_X, P_WQKV, P_WO, P_WG, P_WU, P_WD, P_OUT, P_DBG, P_WS = 4, 6, 8, 12, 14, 16, 18, 20, 22
SWS, SFL = 24, 28
vL, vL16 = 1, 2
SC = ' sc1'

class Gen:
    def __init__(self):
        self.a = Asm()
        self.uid = 0
    def lab(self, s):
        self.uid += 1
        return f'L_{s}_{self.uid}'

def mstamp(g, i):
    if not PROFILE: return
    a = g.a
    a('s_memrealtime s[92:93]')
    a('s_lshl_b32 s94, s2, 3')
    a(f's_add_u32 s94, s94, s{sW}')
    a('s_lshl_b32 s94, s94, 7')
    a(f's_add_u32 s94, s94, {WS_PROF + 4*i}')
    a('v_mov_b32 v255, 0')
    a('s_waitcnt lgkmcnt(0)')
    a('v_mov_b32 v254, s92')
    a('s_mov_b64 exec, 1')
    a(f'buffer_store_dword v254, v255, s[96:99], s94 offen')
    a('s_mov_b64 exec, -1')

def one_lane(a, on, s0=94):
    if on:
        a(f's_mov_b64 exec, 1')
    else:
        a('s_mov_b64 exec, -1')

def publish(g, p):
    a = g.a
    a('v_mov_b32 v3, 1')
    a('s_and_b32 s90, s2, 7')
    a('s_mov_b64 exec, 1')
    if p == 1:
        a('s_lshl_b32 s90, s90, 5')
        a('v_mov_b32 v4, s90')
        a(f'buffer_atomic_add v3, v4, s[{SFL}:{SFL+3}], 0 offen sc1')
    else:
        a('s_lshl_b32 s90, s90, 8')
        a(f's_add_u32 s90, s90, {WS_CNT + C_P1*256}')
        a('v_mov_b32 v4, 0')
        a(f'buffer_atomic_add v3, v4, s[{SWS}:{SWS+3}], s90 offen sc1')
    a('s_mov_b64 exec, -1')

def poll_load(a, p, vaddr, vdst):
    a('s_mov_b64 exec, 0xff')
    if p == 1:
        a(f'v_lshlrev_b32 v{vaddr}, 5, v{vL}')
        a(f'buffer_load_dword v{vdst}, v{vaddr}, s[{SFL}:{SFL+3}], 0 offen sc1')
    else:
        a(f'v_lshlrev_b32 v{vaddr}, 8, v{vL}')
        a(f's_mov_b32 s91, {WS_CNT + C_P1*256}')
        a(f'buffer_load_dword v{vdst}, v{vaddr}, s[{SWS}:{SWS+3}], s91 offen sc1')
    a('s_mov_b64 exec, -1')

def wait_flags(g, p, vt=3, st=90):
    a = g.a
    L = g.lab('poll'); Ld = g.lab('polld')
    a(f's_mov_b32 s{st}, 0')
    a.label(L)
    poll_load(a, p, vt, vt+1)
    a('s_waitcnt vmcnt(0)')
    check_flags(a, p, vt+1, vt+2)
    a(f's_cbranch_scc1 {Ld}')
    a('s_sleep 2')
    a(f's_add_u32 s{st}, s{st}, 1')
    a(f's_cmp_lt_u32 s{st}, 0x40000')
    a(f's_cbranch_scc1 {L}')
    a.label(Ld)

def check_flags(a, p, vx, vt):
    a(f'v_cmp_le_u32 vcc, 32, v{vx}')
    a('s_and_b32 s91, vcc_lo, 0xff')
    a('s_cmp_eq_u32 s91, 0xff')

def arrive(g, sIdx, vt=3):
    a = g.a
    a(f's_lshl_b32 s90, s{sIdx}, 8')
    a(f's_add_u32 s90, s90, {WS_CNT}')
    a(f'v_mov_b32 v{vt}, 1')
    a(f'v_mov_b32 v{vt+1}, 0')
    a('s_mov_b64 exec, 1')
    a(f'buffer_atomic_add v{vt}, v{vt+1}, s[{SWS}:{SWS+3}], s90 offen sc1')
    a('s_mov_b64 exec, -1')

def wait_cnt(g, sIdx, target, n=1, vt=8):
    a = g.a
    L = g.lab('pc'); Ld = g.lab('pcd')
    a(f's_lshl_b32 s91, s{sIdx}, 8')
    a(f's_add_u32 s91, s91, {WS_CNT}')
    a(f'v_lshlrev_b32 v{vt}, 8, v{vL}')
    a(f's_mov_b32 s90, 0')
    if n < 64: a(f's_mov_b64 exec, {hex((1 << n) - 1)}')
    a.label(L)
    a(f'buffer_load_dword v{vt+1}, v{vt}, s[{SWS}:{SWS+3}], s91 offen sc1')
    a('s_waitcnt vmcnt(0)')
    a(f'v_cmp_le_u32 vcc, {target}, v{vt+1}')
    a('s_cmp_eq_u64 vcc, exec')
    a(f's_cbranch_scc1 {Ld}')
    a('s_sleep 2')
    a('s_add_u32 s90, s90, 1')
    a('s_cmp_lt_u32 s90, 0x40000')
    a(f's_cbranch_scc1 {L}')
    a.label(Ld)
    a('s_mov_b64 exec, -1')

def loader(g, NST, R, NI, slot_bytes, dma_fn, sT, sSlot, sBase, lag, npre, pre_hook=None, first_all=False):
    a = g.a
    def issue():
        dma_fn()
        a(f's_add_u32 s{sSlot}, s{sSlot}, {slot_bytes}')
        a(f's_cmp_ge_u32 s{sSlot}, s{sT}')
        a(f's_cselect_b32 s{sT+1}, {R*slot_bytes}, 0')
        a(f's_sub_u32 s{sSlot}, s{sSlot}, s{sT+1}')
    def issue_n(n):
        if n <= 0: return
        if n == 1:
            issue(); return
        l = g.lab('li')
        a(f's_mov_b32 s{sT+2}, 0')
        a.label(l)
        issue()
        a(f's_add_u32 s{sT+2}, s{sT+2}, 1')
        a(f's_cmp_lt_u32 s{sT+2}, {n}')
        a(f's_cbranch_scc1 {l}')
    a(f's_mov_b32 s{sSlot}, s{sBase}')
    a(f's_add_u32 s{sT}, s{sBase}, {R*slot_bytes}')
    issued = min(npre, NST, R)
    maxfl = 63 // NI
    issued = min(issued, maxfl)
    pre = issued
    sched = []
    for s in range(NST):
        rem = issued - 1 - s
        allowed = min(NST, R + max(0, s - lag + 1), s + 1 + maxfl) - issued
        n = max(0, min(allowed, 2))
        sched.append((rem, n)); issued += n
    assert issued == NST, (issued, NST)
    issue_n(pre)
    i = 0
    while i < NST:
        j = i
        while j < NST and sched[j] == sched[i]: j += 1
        rem, n = sched[i]; reps = j - i
        assert 0 <= rem*NI <= 63, (rem, NI)
        def body():
            a(f's_waitcnt vmcnt({rem*NI})')
            a('s_barrier')
            for _ in range(n): issue()
        if reps >= 3:
            l = g.lab('lr')
            a(f's_mov_b32 s{sT+2}, 0')
            a.label(l)
            body()
            a(f's_add_u32 s{sT+2}, s{sT+2}, 1')
            a(f's_cmp_lt_u32 s{sT+2}, {reps}')
            a(f's_cbranch_scc1 {l}')
        else:
            for _ in range(reps): body()
        i = j

def end_phase(g, p):
    a = g.a
    L = g.lab('nopub')
    mstamp(g, 4*(p-2) + 2)
    a('s_waitcnt vmcnt(0)')
    a('s_barrier')
    mstamp(g, 4*(p-2) + 3)
    a(f's_cmp_lg_u32 s{sW}, 0')
    a(f's_cbranch_scc1 {L}')
    publish(g, p)
    a.label(L)

def phase_qkv(g):
    a = g.a
    NST = 10; R = 5
    sMT, sNT, sT, sT2 = 32, 33, 34, 35
    sWM, sWN = 36, 37
    SX, SW_ = 40, 44
    sHS, sTS, sBASE, sSC = 48, 49, 50, 51
    sTile = 52; sC4 = 54
    sSlot, sDelta, sCnt, sWrap = 58, 59, 60, 61
    sXs = 64
    sLT = 72
    sLB = 75
    sSpare = 76
    AX = 48; AW = 56; ACC = 80; FR = 144
    vXo = 10
    Lspare = g.lab('spare'); Lcomp = g.lab('qcomp'); Lend = g.lab('qend'); Lv = g.lab('qv'); Lp0 = g.lab('p0')
    a(f's_and_b32 s{sT}, s2, 7')
    a(f's_lshr_b32 s{sT2}, s2, 3')
    a(f's_lshr_b32 s{sMT}, s{sT}, 1')
    a(f's_lshl_b32 s{sMT}, s{sMT}, 2')
    a(f's_and_b32 s{sNT}, s{sT2}, 3')
    a(f's_add_u32 s{sMT}, s{sMT}, s{sNT}')
    a(f's_and_b32 s{sNT}, s{sT}, 1')
    a(f's_lshl_b32 s{sNT}, s{sNT}, 3')
    a(f's_lshr_b32 s{sSpare}, s{sT2}, 2')
    a(f's_add_u32 s{sNT}, s{sNT}, s{sSpare}')
    a(f's_cmp_lt_u32 s{sW}, 4')
    a(f's_cbranch_scc1 {Lcomp}')
    a(f's_cmp_eq_u32 s{sNT}, 15')
    a(f's_cbranch_scc1 {Lspare}')
    Lw = g.lab('qldw')
    a(f's_and_b32 s{sT}, s{sW}, 1')
    a(f's_cmp_ge_u32 s{sW}, 6')
    a(f's_cbranch_scc1 {Lw}')
    a(f'v_lshrrev_b32 v3, 3, v{vL}')
    a(f's_lshl_b32 s{sT2}, s{sT}, 3')
    a(f's_lshl_b32 s{sLB}, s{sMT}, 7')
    a(f's_add_u32 s{sT2}, s{sT2}, s{sLB}')
    a(f'v_add_u32 v3, s{sT2}, v3')
    a(f's_movk_i32 s{sT2}, 1280')
    a(f'v_mul_lo_u32 v3, v3, s{sT2}')
    a(f'v_lshrrev_b32 v4, 4, v{vL}')
    a(f's_lshl_b32 s{sT2}, s{sT}, 2')
    a(f'v_add_u32 v4, s{sT2}, v4')
    a(f'v_and_b32 v5, 7, v{vL}')
    a(f'v_xor_b32 v4, v4, v5')
    a(f'v_lshl_add_u32 v{vXo}, v4, 4, v3')
    for j in range(8): a(f's_mov_b32 s{sXs+j}, {j*16*1280}')
    a(f's_lshl_b32 s{sLB}, s{sT}, 10')
    srd(a, SX, P_X, 2048*1280)
    def dmax():
        for j in range(8):
            a(f's_add_u32 m0, s{sSlot}, {j*2048}')
            a(f'buffer_load_dwordx4 v{vXo}, s[{SX}:{SX+3}], s{sXs+j} offen lds')
            a(f's_add_u32 s{sXs+j}, s{sXs+j}, 128')
    loader(g, NST, R, 8, 32768, dmax, sLT, sSlot, sLB, lag=2, npre=2)
    a(f's_branch {Lend}')
    a.label(Lw)
    a(f'v_lshrrev_b32 v3, 4, v{vL}')
    a(f'v_lshlrev_b32 v4, 2, v3')
    a(f'v_and_b32 v5, 15, v{vL}')
    a(f'v_xor_b32 v4, v4, v5')
    a(f's_lshl_b32 s{sT2}, s{sT}, 2')
    a(f'v_add_u32 v3, s{sT2}, v3')
    a(f's_movk_i32 s{sT2}, 3840')
    a(f'v_mul_lo_u32 v3, v3, s{sT2}')
    a(f'v_lshl_add_u32 v3, v4, 4, v3')
    a(f's_lshl_b32 s{sT2}, s{sNT}, 8')
    a(f'v_add_u32 v{vXo}, s{sT2}, v3')
    for j in range(8): a(f's_mov_b32 s{sXs+j}, {8*j*3840}')
    a(f's_lshl_b32 s{sLB}, s{sT}, 10')
    a(f's_add_u32 s{sLB}, s{sLB}, 16384')
    srd(a, SW_, P_WQKV, 640*3840)
    def dmaw():
        for j in range(8):
            a(f's_add_u32 m0, s{sSlot}, {j*2048}')
            a(f'buffer_load_dwordx4 v{vXo}, s[{SW_}:{SW_+3}], s{sXs+j} offen lds')
            a(f's_add_u32 s{sXs+j}, s{sXs+j}, {64*3840}')
    loader(g, NST, R, 8, 32768, dmaw, sLT, sSlot, sLB, lag=2, npre=2)
    a(f's_branch {Lend}')

    a.label(Lcomp)
    srd(a, SX, P_X, 2048*1280)
    srd(a, SW_, P_WQKV, 640*3840)
    Lnz = g.lab('nozero')
    a(f's_cmp_lg_u32 s2, 0')
    a(f's_cbranch_scc1 {Lnz}')
    a(f's_cmp_lg_u32 s{sW}, 1')
    a(f's_cbranch_scc1 {Lnz}')
    a(f'v_lshlrev_b32 v3, 8, v{vL}')
    a('v_mov_b32 v4, 0')
    a(f's_mov_b32 s{sT}, {WS_CNT}')
    a(f'buffer_store_dword v4, v3, s[{SWS}:{SWS+3}], s{sT} offen sc1')
    a(f's_mov_b32 s{sT}, {WS_CNT + 64*256}')
    a(f'buffer_store_dword v4, v3, s[{SWS}:{SWS+3}], s{sT} offen sc1')
    a.label(Lnz)
    Lp0s = g.lab('p0s'); Lp0e = g.lab('p0e')
    a(f's_cmp_lg_u32 s{sW}, 0')
    a(f's_cbranch_scc1 {Lp0s}')
    a(f's_cmp_ge_u32 s2, 240')
    a(f's_cbranch_scc1 {Lp0e}')
    sdiv(a, sT, 2, 30, sT2)
    a(f's_mul_i32 s{sT2}, s{sT}, 30')
    a(f's_sub_u32 s{sC4}, s2, s{sT2}')
    a(f'v_lshrrev_b32 v3, 3, v{vL}')
    a(f's_movk_i32 s{sT2}, 3840')
    a(f'v_mul_lo_u32 v3, v3, s{sT2}')
    a(f'v_and_b32 v4, 7, v{vL}')
    a(f'v_lshl_add_u32 v3, v4, 4, v3')
    a(f's_mul_i32 s{sT2}, s{sT}, {80*3840}')
    a(f's_lshl_b32 s{sC4+1}, s{sC4}, 7')
    a(f's_add_u32 s{sT2}, s{sT2}, s{sC4+1}')
    for q in range(10):
        a(f'buffer_load_dwordx4 v[{16+4*q}:{16+4*q+3}], v3, s[{SW_}:{SW_+3}], s{sT2} offen')
        if q < 9: a(f's_add_u32 s{sT2}, s{sT2}, {8*3840}')
    U = 56
    for j in range(8): a(f'v_mov_b32 v{U+j}, 0')
    for q in range(10):
        a(f's_waitcnt vmcnt({9-q})')
        for r in range(4):
            a(f'v_lshlrev_b32 v5, 16, v{16+4*q+r}')
            a(f'v_and_b32 v6, 0xffff0000, v{16+4*q+r}')
            a(f'v_add_f32 v{U+2*r}, v{U+2*r}, v5')
            a(f'v_add_f32 v{U+2*r+1}, v{U+2*r+1}, v6')
    for j in range(8):
        a(f'v_add_f32_dpp v{U+j}, v{U+j}, v{U+j} row_ror:8 row_mask:0xf bank_mask:0xf')
    for j in range(8):
        a(f'v_mov_b32 v5, v{U+j}')
        a(f'v_permlane16_swap_b32 v{U+j}, v5')
        a(f'v_add_f32 v{U+j}, v{U+j}, v5')
    for j in range(8):
        a(f'v_mov_b32 v5, v{U+j}')
        a(f'v_permlane32_swap_b32 v{U+j}, v5')
        a(f'v_add_f32 v{U+j}, v{U+j}, v5')
    a(f's_mul_i32 s{sT}, s{sT}, 7680')
    a(f's_lshl_b32 s{sT2}, s{sC4}, 8')
    a(f's_add_u32 s{sT}, s{sT}, s{sT2}')
    a(f's_add_u32 s{sT}, s{sT}, {WS_CWQ}')
    a(f'v_lshlrev_b32 v5, 5, v{vL}')
    a('s_mov_b64 exec, 0xff')
    a(f'buffer_store_dwordx4 v[{U}:{U+3}], v5, s[{SWS}:{SWS+3}], s{sT} offen{SC}')
    a(f'buffer_store_dwordx4 v[{U+4}:{U+7}], v5, s[{SWS}:{SWS+3}], s{sT} offen offset:16{SC}')
    a('s_mov_b64 exec, -1')
    a(f's_branch {Lp0e}')
    a.label(Lp0s)
    a(f'v_lshlrev_b32 v3, 2, v{vL}')
    T0 = 16
    for t in range(3):
        a(f's_mul_i32 s{sT}, s{sW}, 3')
        a(f's_add_u32 s{sT}, s{sT}, {t} ')
        a(f's_sub_u32 s{sT}, s{sT}, 3')
        a(f's_min_u32 s{sT}, s{sT}, 7')
        a(f's_lshl_b32 s{sT2}, s2, 3')
        a(f's_add_u32 s{sC4+t}, s{sT}, s{sT2}')
        a(f's_mul_i32 s{sT2}, s{sC4+t}, 1280')
        for q in range(5):
            a(f'buffer_load_dword v{T0+5*t+q}, v3, s[{SX}:{SX+3}], s{sT2} offen offset:{q*256}')
    S0 = 4
    for t in range(3):
        a(f'v_mov_b32 v{S0+2*t}, 0'); a(f'v_mov_b32 v{S0+2*t+1}, 0')
    for t in range(3):
        a(f's_waitcnt vmcnt({5*(2-t)})')
        for q in range(5):
            r = T0 + 5*t + q
            a(f'v_and_b32 v10, 0xffff0000, v{r}')
            a(f'v_lshlrev_b32 v11, 16, v{r}')
            a(f'v_add_f32 v{S0+2*t}, v{S0+2*t}, v10')
            a(f'v_fmac_f32 v{S0+2*t+1}, v10, v10')
            a(f'v_add_f32 v{S0+2*t}, v{S0+2*t}, v11')
            a(f'v_fmac_f32 v{S0+2*t+1}, v11, v11')
    regs = list(range(S0, S0+6))
    for rot in (8, 4, 2, 1):
        for r in regs: a(f'v_add_f32_dpp v{r}, v{r}, v{r} row_ror:{rot} row_mask:0xf bank_mask:0xf')
    for r in regs:
        a(f'v_mov_b32 v10, v{r}')
        a(f'v_permlane16_swap_b32 v{r}, v10')
        a(f'v_add_f32 v{r}, v{r}, v10')
    for r in regs:
        a(f'v_mov_b32 v10, v{r}')
        a(f'v_permlane32_swap_b32 v{r}, v10')
        a(f'v_add_f32 v{r}, v{r}, v10')
    for t in range(3):
        a(f'v_mul_f32 v10, {f32hex(1/640)}, v{S0+2*t}')
        a(f'v_mul_f32 v11, {f32hex(1/640)}, v{S0+2*t+1}')
        a(f'v_fma_f32 v11, -v10, v10, v11')
        a(f'v_max_f32 v11, 0, v11')
        a(f'v_add_f32 v11, {f32hex(1e-5)}, v11')
        a(f'v_rsq_f32 v{12+2*t}, v11')
        a(f'v_mul_f32 v{13+2*t}, v10, v{12+2*t}')
        a(f'v_sub_f32 v{13+2*t}, 0, v{13+2*t}')
        a(f's_lshl_b32 s{sT}, s{sC4+t}, 3')
        a(f's_add_u32 s{sT}, s{sT}, {WS_ST1}')
        a('v_mov_b32 v10, 0')
        a('s_mov_b64 exec, 1')
        a(f'buffer_store_dwordx2 v[{12+2*t}:{13+2*t}], v10, s[{SWS}:{SWS+3}], s{sT} offen{SC}')
        a('s_mov_b64 exec, -1')
    a.label(Lp0e)
    a(f's_cmp_eq_u32 s{sNT}, 15')
    a(f's_cbranch_scc1 {Lspare}')
    a(f's_lshr_b32 s{sWM}, s{sW}, 1')
    a(f's_and_b32 s{sWN}, s{sW}, 1')
    a(f'v_and_b32 v3, 31, v{vL}')
    a(f'v_lshrrev_b32 v4, 5, v{vL}')
    a(f'v_bfe_u32 v5, v3, 1, 3')
    a(f'v_xor_b32 v5, v5, v4')
    a(f'v_lshlrev_b32 v5, 4, v5')
    a(f'v_lshl_add_u32 v5, v3, 7, v5')
    a(f's_lshl_b32 s{sT}, s{sWM}, 13')
    a(f'v_add_u32 v5, s{sT}, v5')
    for ks in range(4):
        if ks: a(f'v_xor_b32 v{AX+ks}, {ks << 5}, v5')
        else: a(f'v_mov_b32 v{AX}, v5')
    a(f'v_bfe_u32 v5, v{vL}, 2, 2')
    a(f'v_lshl_add_u32 v6, v4, 3, v5')
    a(f'v_lshlrev_b32 v6, 8, v6')
    a(f'v_bfe_u32 v7, v{vL}, 4, 1')
    a(f'v_bfe_u32 v8, v{vL}, 1, 1')
    a(f'v_lshl_add_u32 v7, v7, 1, v8')
    a(f'v_and_b32 v8, 1, v{vL}')
    a(f'v_lshlrev_b32 v8, 3, v8')
    a(f'v_lshl_add_u32 v7, v7, 4, v8')
    a(f'v_add_u32 v6, v6, v7')
    a(f'v_add_u32 v6, 16384, v6')
    for nt in range(2):
        a(f's_lshl_b32 s{sT2}, s{sWN}, 1')
        a(f's_add_u32 s{sT}, s{sT2}, {nt}')
        a(f'v_xor_b32 v7, s{sT}, v5')
        a(f'v_lshl_add_u32 v{AW + nt}, v7, 6, v6')
    for i in range(64): a(f'v_mov_b32 v{ACC+i}, 0')
    def read_frags(ks, st):
        f = FR + 16*st
        L = []
        for mt in range(2):
            L.append(f'ds_read_b128 v[{f+4*mt}:{f+4*mt+3}], v{AX + ks} offset:{mt*4096}')
        for nt in range(2):
            for rd in range(2):
                L.append(f'ds_read_b64_tr_b16 v[{f+8+4*nt+2*rd}:{f+8+4*nt+2*rd+1}], v{AW + nt} offset:{ks*4096 + rd*1024}')
        return L
    def adv():
        a(f's_add_u32 s{sSlot}, s{sSlot}, 1')
        a(f's_cmp_eq_u32 s{sSlot}, {R}')
        a(f's_cselect_b32 s{sDelta}, s{sWrap}, 32768')
        a(f's_cselect_b32 s{sSlot}, 0, s{sSlot}')
        return [f'v_add_u32 v{r}, s{sDelta}, v{r}' for r in list(range(AX, AX+4)) + [AW, AW+1]]
    def kstep(swap, st, fill):
        f = FR + 16*st
        fill = list(fill or [])
        i = 0
        for mt in range(2):
            for nt in range(2):
                d = ACC + (mt*2 + nt)*16
                X = f'v[{f+4*mt}:{f+4*mt+3}]'; W = f'v[{f+8+4*nt}:{f+8+4*nt+3}]'
                A, B = (X, W) if swap else (W, X)
                a(f'v_mfma_f32_32x32x16_bf16 v[{d}:{d+15}], {A}, {B}, v[{d}:{d+15}]')
                for l in fill[i*2:(i+1)*2] if i < 3 else fill[6:]: a(l)
                i += 1
    def stage(swap, last, hook=None, prebar=False):
        for ks in range(4):
            a('s_waitcnt lgkmcnt(6)' if not (last and ks == 3) else 's_waitcnt lgkmcnt(0)')
            if ks == 2 and not last:
                if prebar: a('s_waitcnt vmcnt(0)')
                a('s_barrier')
                for l in adv(): a(l)
                if hook: hook()
            if ks < 2: nxt = read_frags(ks+2, ks+2)
            elif not last: nxt = read_frags(ks-2, ks-2)
            else: nxt = None
            kstep(swap, ks, nxt)
    vPoll = 60
    CWL = 64
    STL = 208
    def mainloop(swap, lab):
        a(f's_mov_b32 s{sWrap}, {(32768 - R*32768) & 0xffffffff}')
        a(f's_mov_b32 s{sSlot}, 0')
        a(f's_mov_b32 s{sCnt}, 0')
        a('s_nop 0')
        mstamp(g, 0)
        a('s_barrier')
        mstamp(g, 1)
        for l in read_frags(0, 0) + read_frags(1, 1): a(l)
        def hook():
            Lnp = g.lab('np1')
            a(f's_cmp_lg_u32 s{sW}, 0')
            a(f's_cbranch_scc1 {Lnp}')
            publish(g, 1)
            a.label(Lnp)
        stage(swap, False, hook=hook, prebar=True)
        Ll = g.lab('qloop'); Ls = g.lab('qskip')
        a.label(Ll)
        def pubhook():
            pass
        for u in range(2): stage(swap, False)
        a(f's_cmp_lg_u32 s{sCnt}, 1')
        a(f's_cbranch_scc1 {Ls}')
        poll_load(a, 1, vPoll, vPoll+1)
        a.label(Ls)
        Ls2 = g.lab('qskip2'); Lok = g.lab('qok')
        a(f's_cmp_lg_u32 s{sCnt}, 2')
        a(f's_cbranch_scc1 {Ls2}')
        a('s_waitcnt vmcnt(0)')
        check_flags(a, 1, vPoll+1, vPoll+2)
        a(f's_cbranch_scc1 {Lok}')
        wait_flags(g, 1, vPoll)
        a.label(Lok)
        late_loads(swap)
        a.label(Ls2)
        a(f's_add_u32 s{sCnt}, s{sCnt}, 1')
        a(f's_cmp_lt_u32 s{sCnt}, 4')
        a(f's_cbranch_scc1 {Ll}')
        stage(swap, True)
    def late_loads(swap):
        a(f'v_and_b32 v{vPoll}, 31, v{vL}')
        a(f's_lshl_b32 s{sT}, s{sW}, 5')
        a(f's_lshl_b32 s{sT2}, s{sNT}, 7')
        a(f's_add_u32 s{sT}, s{sT}, s{sT2}')
        a(f'v_add_lshl_u32 v{vPoll}, v{vPoll}, s{sT}, 2')
        for p in range(8):
            a(f's_mov_b32 s{sT}, {WS_CWQ + p*7680}')
            a(f'buffer_load_dword v{CWL+p}, v{vPoll}, s[{SWS}:{SWS+3}], s{sT} offen{SC}')
        for mt in range(2):
            a(f's_lshl_b32 s{sT}, s{sMT}, 7')
            a(f's_lshl_b32 s{sT2}, s{sWM}, 6')
            a(f's_add_u32 s{sT}, s{sT}, s{sT2}')
            a(f's_add_u32 s{sT}, s{sT}, {mt*32}')
            a(f's_lshl_b32 s{sT}, s{sT}, 3')
            a(f's_add_u32 s{sT}, s{sT}, {WS_ST1}')
            if not swap:
                a(f'v_and_b32 v{vPoll}, 31, v{vL}')
                a(f'v_lshlrev_b32 v{vPoll}, 3, v{vPoll}')
                a(f'buffer_load_dwordx2 v[{STL+2*mt}:{STL+2*mt+1}], v{vPoll}, s[{SWS}:{SWS+3}], s{sT} offen{SC}')
            else:
                a(f'v_lshrrev_b32 v{vPoll}, 5, v{vL}')
                a(f'v_lshlrev_b32 v{vPoll}, 5, v{vPoll}')
                for gg in range(4):
                    r = (STL if mt == 0 else 16) + gg*8
                    for hh in range(2):
                        a(f'buffer_load_dwordx4 v[{r+4*hh}:{r+4*hh+3}], v{vPoll}, s[{SWS}:{SWS+3}], s{sT} offen offset:{gg*64 + hh*16}{SC}')
    def cw_exchange():
        a('s_waitcnt vmcnt(0)')
        for p in range(1, 8): a(f'v_add_f32 v{CWL}, v{CWL}, v{CWL+p}')
        a(f'v_and_b32 v3, 31, v{vL}')
        a(f's_lshl_b32 s{sT}, s{sW}, 5')
        a(f'v_add_lshl_u32 v3, v3, s{sT}, 2')
        a(f'ds_write_b32 v3, v{CWL}')
        a('s_waitcnt lgkmcnt(0)')
    def tile_soff():
        for mt in range(2):
            a(f's_lshl_b32 s{sT2}, s{sWM}, 1')
            a(f's_add_u32 s{sT}, s{sT2}, {mt}')
            a(f's_lshl_b32 s{sT2}, s{sMT}, 2')
            a(f's_add_u32 s{sT}, s{sT}, s{sT2}')
            a(f's_mul_i32 s{sT}, s{sT}, s{sTS}')
            a(f's_add_u32 s{sTile+mt}, s{sT}, s{sBASE}')
    def common_pre():
        a('s_waitcnt vmcnt(0)')
    a(f's_cmp_ge_u32 s{sNT}, 10')
    a(f's_cbranch_scc1 {Lv}')
    Lk = g.lab('isk')
    a(f's_mov_b32 s{sSC}, 1.0')
    a(f's_mov_b32 s{sHS}, 163840')
    a(f's_movk_i32 s{sTS}, 2560')
    a(f's_mov_b32 s{sBASE}, {WS_KV}')
    a(f's_sub_u32 s{sC4}, s{sNT}, 5')
    a(f's_cmp_ge_u32 s{sNT}, 5')
    a(f's_cbranch_scc1 {Lk}')
    a(f's_mov_b32 s{sSC}, {f32hex(QSCALE)}')
    a(f's_mov_b32 s{sHS}, 81920')
    a(f's_movk_i32 s{sTS}, 1280')
    a(f's_mov_b32 s{sBASE}, {WS_Q}')
    a(f's_mov_b32 s{sC4}, s{sNT}')
    a.label(Lk)
    tile_soff()
    vAD = 72
    vTok = 3; vH = 4
    a(f'v_and_b32 v{vTok}, 31, v{vL}')
    a(f'v_lshrrev_b32 v{vH}, 5, v{vL}')
    a(f's_lshl_b32 s{sC4}, s{sC4}, 5')
    a(f'v_lshlrev_b32 v9, 4, v{vTok}')
    a(f'v_lshlrev_b32 v10, 3, v{vTok}')
    a(f'v_add_u32 v10, 1024, v10')
    a(f's_movk_i32 s{sT2}, 205')
    for nt in range(2):
        for gg in range(4):
            r = vAD + nt*4 + gg
            a(f's_lshl_b32 s{sT}, s{sWN}, 4')
            a(f's_add_u32 s{sT}, s{sT}, s{sC4}')
            a(f's_add_u32 s{sT}, s{sT}, {nt*8 + 2*gg}')
            a(f'v_add_u32 v11, s{sT}, v{vH}')
            a(f'v_mul_u32_u24 v12, s{sT2}, v11')
            a(f'v_lshrrev_b32 v12, 10, v12')
            a(f'v_mul_u32_u24 v13, 5, v12')
            a(f'v_sub_u32 v11, v11, v13')
            a(f'v_lshrrev_b32 v13, 1, v11')
            a(f'v_lshl_add_u32 v13, v13, 9, v9')
            a(f'v_and_b32 v14, 1, v11')
            a(f'v_lshl_add_u32 v13, v14, 3, v13')
            a(f'v_cmp_eq_u32 vcc, 4, v11')
            a(f'v_cndmask_b32 v13, v13, v10, vcc')
            a(f'v_mul_lo_u32 v12, v12, s{sHS}')
            a(f'v_add_u32 v{r}, v12, v13')
    mainloop(False, 'qk')
    cw_exchange()
    a('s_barrier')
    vA = 4; vB = 6; vCWv = 16
    a(f'v_lshrrev_b32 v3, 5, v{vL}')
    for nt in range(2):
        a(f's_lshl_b32 s{sT}, s{sWN}, 6')
        a(f's_add_u32 s{sT}, s{sT}, {nt*32}')
        a(f'v_lshl_add_u32 v8, v3, 2, s{sT}')
        a(f'v_lshlrev_b32 v8, 2, v8')
        for gg in range(4):
            a(f'ds_read_b128 v[{vCWv+nt*16+gg*4}:{vCWv+nt*16+gg*4+3}], v8 offset:{gg*32}')
    for mt in range(2):
        a(f'v_mul_f32 v{vA+mt}, s{sSC}, v{STL+2*mt}')
        a(f'v_mul_f32 v{vB+mt}, s{sSC}, v{STL+2*mt+1}')
    a('s_waitcnt lgkmcnt(0)')
    vT = 48
    n = 0
    for mt in range(2):
        for nt in range(2):
            d = ACC + (mt*2 + nt)*16
            for gg in range(4):
                t = vT + ((n & 1) * 6); n += 1
                for i in range(4): a(f'v_mul_f32 v{t+i}, v{vB+mt}, v{vCWv+nt*16+gg*4+i}')
                for i in range(4): a(f'v_fmac_f32 v{t+i}, v{vA+mt}, v{d+4*gg+i}')
                a(f'v_cvt_pk_bf16_f32 v{t+4}, v{t}, v{t+1}')
                a(f'v_cvt_pk_bf16_f32 v{t+5}, v{t+2}, v{t+3}')
                a(f'buffer_store_dwordx2 v[{t+4}:{t+5}], v{vAD+nt*4+gg}, s[{SWS}:{SWS+3}], s{sTile+mt} offen{SC}')
    Lfin = g.lab('qfin')
    a(f's_branch {Lfin}')
    a.label(Lv)
    a(f's_movk_i32 s{sTS}, 2560')
    a(f's_mov_b32 s{sBASE}, {WS_KV + 1280}')
    tile_soff()
    vN = 3; vH = 4; vADv = 72
    a(f'v_and_b32 v{vN}, 31, v{vL}')
    a(f'v_lshrrev_b32 v{vH}, 5, v{vL}')
    a(f's_sub_u32 s{sC4}, s{sNT}, 10')
    a(f's_lshl_b32 s{sC4}, s{sC4}, 7')
    a(f's_movk_i32 s{sC4+1}, 3277')
    a(f's_mov_b32 s{sHS}, 163840')
    for nt in range(2):
        a(f's_lshl_b32 s{sT}, s{sWN}, 6')
        a(f's_add_u32 s{sT}, s{sT}, {nt*32}')
        a(f's_add_u32 s{sT}, s{sT}, s{sC4}')
        a(f'v_add_u32 v8, s{sT}, v{vN}')
        a(f'v_mul_u32_u24 v9, s{sC4+1}, v8')
        a(f'v_lshrrev_b32 v9, 16, v9')
        a(f'v_mul_u32_u24 v10, 20, v9')
        a(f'v_sub_u32 v8, v8, v10')
        a(f'v_mul_lo_u32 v9, v9, s{sHS}')
        a(f'v_lshl_add_u32 v9, v8, 4, v9')
        a(f'v_mul_u32_u24 v10, 320, v{vH}')
        a(f'v_add_u32 v{vADv+nt}, v9, v10')
    mainloop(True, 'v')
    cw_exchange()
    a('s_barrier')
    vC = 4
    a(f'v_and_b32 v3, 31, v{vL}')
    for nt in range(2):
        a(f's_lshl_b32 s{sT}, s{sWN}, 6')
        a(f's_add_u32 s{sT}, s{sT}, {nt*32}')
        a(f'v_add_lshl_u32 v8, v3, s{sT}, 2')
        a(f'ds_read_b32 v{vC+nt}, v8')
    a('s_waitcnt lgkmcnt(0)')
    vT = 144
    n = 0
    for mt in range(2):
        for nt in range(2):
            d = ACC + (mt*2 + nt)*16
            for t2 in range(2):
                t = vT + (n & 1)*12; n += 1
                for g2 in range(2):
                    gg = 2*t2 + g2
                    r = (STL if mt == 0 else 16) + gg*8
                    for i in range(4): a(f'v_mul_f32 v{t+4*g2+i}, v{r+2*i+1}, v{vC+nt}')
                    for i in range(4): a(f'v_fmac_f32 v{t+4*g2+i}, v{r+2*i}, v{d+4*gg+i}')
                for i in range(4): a(f'v_cvt_pk_bf16_f32 v{t+8+i}, v{t+2*i}, v{t+2*i+1}')
                a(f'buffer_store_dwordx4 v[{t+8}:{t+11}], v{vADv+nt}, s[{SWS}:{SWS+3}], s{sTile+mt} offen offset:{t2*640}{SC}')
    a(f's_branch {Lfin}')
    a.label(Lspare)
    a('s_waitcnt vmcnt(0)')
    a('s_barrier')
    Lsp = g.lab('sppub')
    a(f's_cmp_lg_u32 s{sW}, 0')
    a(f's_cbranch_scc1 {Lsp}')
    publish(g, 1)
    a.label(Lsp)
    a(f's_lshl_b32 s{sT}, s{sMT}, 3')
    a(f's_add_u32 s{sT}, s{sT}, s{sW}')
    a(f's_mul_i32 s{sLB}, s{sT}, 7')
    pack16(g, sLB, 7, 800, 20, P_WO, 640*640*2, WS_WOP, 80, 16)
    Lsq = g.lab('spw')
    a(f's_cmp_lg_u32 s{sW}, 0')
    a(f's_cbranch_scc1 {Lsq}')
    wait_flags(g, 1, 8)
    a.label(Lsq)
    a(f's_branch {Lfin}')
    a.label(Lend)
    a('s_barrier')
    a.label(Lfin)
    end_phase(g, 2)

def pack16(g, sF0, n, nmax, KS, ptr, srcsize, dstbase, sb, vb, defer=False):
    a = g.a
    sF, sq, sr, sT, sk, so, sd, st = [sb+i for i in range(8)]
    SR = sb + 8
    v16 = vb; vd = vb + 2
    srd(a, SR, ptr, srcsize)
    Lsk = g.lab('pskip')
    a(f's_cmp_ge_u32 s{sF0}, {nmax}')
    a(f's_cbranch_scc1 {Lsk}')
    a(f'v_and_b32 v{v16}, 15, v{vL}')
    a(f'v_lshrrev_b32 v{v16+1}, 4, v{vL}')
    a(f's_movk_i32 s{st}, {8*1280}')
    a(f'v_mul_lo_u32 v{v16+1}, v{v16+1}, s{st}')
    a(f'v_lshl_add_u32 v{v16}, v{v16}, 1, v{v16+1}')
    for i in range(n):
        reg = vd + 8*i
        a(f's_add_u32 s{sF}, s{sF0}, {i}')
        a(f's_min_u32 s{sF}, s{sF}, {nmax-1}')
        sdiv(a, sq, sF, 5, st)
        a(f's_mul_i32 s{sr}, s{sq}, 5')
        a(f's_sub_u32 s{sr}, s{sF}, s{sr}')
        sdiv(a, sT, sq, KS, st)
        a(f's_mul_i32 s{sk}, s{sT}, {KS}')
        a(f's_sub_u32 s{sk}, s{sq}, s{sk}')
        a(f's_mul_i32 s{so}, s{sk}, {32*1280}')
        a(f's_mul_i32 s{sd}, s{sT}, 160')
        a(f's_add_u32 s{so}, s{so}, s{sd}')
        a(f's_lshl_b32 s{sd}, s{sr}, 5')
        a(f's_add_u32 s{so}, s{so}, s{sd}')
        for j in range(8):
            op = 'buffer_load_short_d16_hi' if j & 1 else 'buffer_load_short_d16'
            a(f'{op} v{reg + j//2 + 4*(j&1)}, v{v16}, s[{SR}:{SR+3}], s{so} offen')
            if j < 7: a(f's_add_u32 s{so}, s{so}, 1280')
    a.label(Lsk)
    def finish():
        Lsk2 = g.lab('pskip2')
        a(f's_cmp_ge_u32 s{sF0}, {nmax}')
        a(f's_cbranch_scc1 {Lsk2}')
        for i in range(n):
            reg = vd + 8*i
            for q in range(4): a(f'v_or_b32 v{reg+q}, v{reg+q}, v{reg+4+q}')
            a(f's_add_u32 s{sF}, s{sF0}, {i}')
            a(f's_min_u32 s{sF}, s{sF}, {nmax-1}')
            a(f's_lshl_b32 s{sd}, s{sF}, 10')
            a(f's_add_u32 s{sd}, s{sd}, {dstbase}')
            a(f'buffer_store_dwordx4 v[{reg}:{reg+3}], v{vL16}, s[{SWS}:{SWS+3}], s{sd} offen{SC}')
        a.label(Lsk2)
    if defer: return finish
    a('s_waitcnt vmcnt(0)')
    finish()

def phase_attn(g):
    a = g.a
    sHead, sQB, sT, sT2 = 32, 33, 34, 35
    sPass, sN = 36, 37
    sMaskV = 38
    sLo = 40
    sOff = 42; sK = 43; sLds = 44
    sGW = 45; sQT = 57
    vQ1 = 4; vQ2 = 8
    AK = 10; AB = 11; AV = 12
    AK0 = 13; AB0 = 14; AV0 = 15
    KA = 24; KB = 32; VF = 36; P = 52; S = 64; O = 96; NM = 112
    PK = 128
    a(f's_and_b32 s{sT}, s2, 7')
    a(f's_lshr_b32 s{sT2}, s2, 3')
    a(f's_lshl_b32 s{sHead}, s{sT}, 2')
    a(f's_lshr_b32 s{sT}, s{sT2}, 3')
    a(f's_add_u32 s{sHead}, s{sHead}, s{sT}')
    a(f's_and_b32 s{sQB}, s{sT2}, 7')
    a(f's_lshl_b32 s{sGW}, s2, 3')
    a(f's_add_u32 s{sGW}, s{sGW}, s{sW}')
    Lw = g.lab('aw')
    a(f's_cmp_lg_u32 s{sW}, 0')
    a(f's_cbranch_scc1 {Lw}')
    wait_flags(g, 2, 16)
    a.label(Lw)
    a('s_barrier')
    mstamp(g, 4)
    a(f'v_and_b32 v3, 31, v{vL}')
    a(f'v_lshlrev_b32 v3, 3, v3')
    a(f'v_mov_b32 v{vQ2}, 0')
    a(f'v_mov_b32 v{vQ2+1}, 0')
    a(f's_lshl_b32 s{sQT}, s{sQB}, 2')
    a(f's_and_b32 s{sT2}, s{sW}, 3')
    a(f's_add_u32 s{sQT}, s{sQT}, s{sT2}')
    a(f's_lshr_b32 s{sT2}, s{sW}, 2')
    a(f's_lshl_b32 s{sT2}, s{sT2}, 5')
    a(f's_add_u32 s{sQT}, s{sQT}, s{sT2}')
    a(f's_lshl_b32 s{sT}, s{sHead}, 6')
    a(f's_add_u32 s{sT}, s{sT}, s{sQT}')
    a(f's_mul_i32 s{sT}, s{sT}, 1280')
    a(f's_add_u32 s{sT}, s{sT}, {WS_Q}')
    a(f's_mov_b32 s{sLo}, -1')
    a(f's_mov_b32 s{sLo+1}, 0')
    a(f's_mul_i32 s{sOff}, s{sHead}, 163840')
    a(f's_lshl_b32 s{sLds}, s{sW}, 10')
    a(f's_add_u32 s{sOff}, s{sOff}, s{sLds}')
    a(f's_add_u32 s{sOff}, s{sOff}, {WS_KV}')
    def dma():
        return [f's_mov_b32 m0, s{sLds}',
                f's_add_u32 s{sLds}, s{sLds}, 8192',
                f'buffer_load_dwordx4 v{vL16}, s[{SWS}:{SWS+3}], s{sOff} offen sc1 lds',
                f's_add_u32 s{sOff}, s{sOff}, 8192']
    for l in dma(): a(l)
    a(f'buffer_load_dwordx4 v[{vQ1}:{vQ1+3}], v{vL16}, s[{SWS}:{SWS+3}], s{sT} offen{SC}')
    a(f's_mov_b64 exec, s[{sLo}:{sLo+1}]')
    a(f'buffer_load_dwordx2 v[{vQ2}:{vQ2+1}], v3, s[{SWS}:{SWS+3}], s{sT} offen offset:1024{SC}')
    a('s_mov_b64 exec, -1')
    for l in dma(): a(l)
    for l in dma(): a(l)
    for l in dma(): a(l)
    a(f'v_and_b32 v60, 31, v{vL}')
    a(f'v_lshrrev_b32 v61, 5, v{vL}')
    a(f'v_mul_u32_u24 v62, 320, v61')
    a(f'v_lshl_add_u32 v62, v60, 4, v62')
    a(f'v_add_u32 v{AV0}, 1280, v62')
    a(f'v_add_u32 v{AB0}, 1024, v3')
    a(f'v_mov_b32 v{AK0}, v{vL16}')
    a(f's_mov_b32 s{sMaskV}, 0x000fffff')
    a(f's_mov_b32 s{sMaskV+1}, 0x000fffff')
    for i in range(16): a(f'v_mov_b32 v{VF+i}, 0x3f803f80')
    a(f's_mov_b32 s{sPass}, 0')
    a(f's_mov_b32 s{sN}, 1')
    a('s_waitcnt vmcnt(2)')
    a('s_barrier')
    mstamp(g, 5)
    def rdK(p, o):
        return [f'ds_read_b128 v[{KA+4*p}:{KA+4*p+3}], v{AK} offset:{o}',
                f'ds_read_b64 v[{KB+2*p}:{KB+2*p+1}], v{AB} offset:{o}']
    def rdV(p, o):
        return [f's_mov_b64 exec, s[{sMaskV}:{sMaskV+1}]',
                f'ds_read_b128 v[{VF+8*p}:{VF+8*p+3}], v{AV} offset:{o}',
                f'ds_read_b128 v[{VF+8*p+4}:{VF+8*p+7}], v{AV} offset:{o+640}',
                's_mov_b64 exec, -1']
    def mfS1(p, c=None):
        C = f'v[{NM}:{NM+15}]' if c is None else c
        return f'v_mfma_f32_32x32x16_bf16 v[{S+16*p}:{S+16*p+15}], v[{KA+4*p}:{KA+4*p+3}], v[{vQ1}:{vQ1+3}], {C}'
    def mfS2(p):
        return f'v_mfma_f32_32x32x8_bf16 v[{S+16*p}:{S+16*p+15}], v[{KB+2*p}:{KB+2*p+1}], v[{vQ2}:{vQ2+1}], v[{S+16*p}:{S+16*p+15}]'
    def mfPV(p, t):
        return f'v_mfma_f32_32x32x16_bf16 v[{O}:{O+15}], v[{VF+8*p+4*t}:{VF+8*p+4*t+3}], v[{P+4*t}:{P+4*t+3}], v[{O}:{O+15}]'
    Lscan = g.lab('scan'); Lsl = g.lab('scanl'); Lloop = g.lab('aloop'); Lfin = g.lab('afin')
    a.label(Lscan)
    a(f'v_mov_b32 v{AK}, v{AK0}')
    a(f'v_mov_b32 v{AB}, v{AB0}')
    a(f'v_mov_b32 v62, 0xff800000')
    a(f's_mov_b32 s{sT}, 0')
    a.label(Lsl)
    for l in rdK(0, 0): a(l)
    a(f'v_add_u32 v{AK}, 2560, v{AK}')
    a(f'v_add_u32 v{AB}, 2560, v{AB}')
    a('s_waitcnt lgkmcnt(0)')
    a(mfS1(0, '0'))
    a(mfS2(0))
    for i in range(8): a(f'v_max3_f32 v62, v{S+2*i}, v{S+2*i+1}, v62')
    a(f's_add_u32 s{sT}, s{sT}, 1')
    a(f's_cmp_lt_u32 s{sT}, s{sN}')
    a(f's_cbranch_scc1 {Lsl}')
    a('v_mov_b32 v63, v62')
    a('v_permlane32_swap_b32 v62, v63')
    a('v_max_f32 v62, v62, v63')
    a('v_sub_f32 v62, 0, v62')
    for i in range(16):
        a(f'v_mov_b32 v{NM+i}, v62')
        a(f'v_mov_b32 v{O+i}, 0')
    a(f'v_mov_b32 v{AK}, v{AK0}')
    a(f'v_mov_b32 v{AB}, v{AB0}')
    a(f'v_mov_b32 v{AV}, v{AV0}')
    UNR = 8
    for l in rdK(0, 0) + rdK(1, 2560) + rdV(0, 0): a(l)
    for i in range(8): a(f'v_mov_b32 v{P+i}, 0')
    a('s_waitcnt lgkmcnt(4)')
    a(mfS1(0)); a(mfS2(0))
    a(f's_mov_b32 s{sK}, 0')
    a.label(Lloop)
    a(f's_lshl_b32 s{sT2}, s{sPass}, 8')
    a(f's_or_b32 s{sT2}, s{sT2}, s{sK}')
    for i in range(UNR):
        p = i & 1
        lab = g.lab('ad')
        a(f's_cmp_lg_u32 s{sT2}, 0')
        a(f's_cbranch_scc1 {lab}')
        if i == 4:
            a('s_waitcnt vmcnt(7)')
            a('s_barrier')
        for l in dma() + dma(): a(l)
        a.label(lab)
        if i == 6:
            lab = g.lab('ab2')
            a(f's_cmp_lg_u32 s{sT2}, 1')
            a(f's_cbranch_scc1 {lab}')
            a('s_waitcnt vmcnt(0)')
            a('s_barrier')
            a.label(lab)
        s_ = S + 16*p
        ex = lambda r: a(f'v_exp_f32 v{s_+r}, v{s_+r}')
        cv = lambda k: a(f'v_cvt_pk_bf16_f32 v{P+k}, v{s_+2*k}, v{s_+2*k+1}')
        a(mfPV(p ^ 1, 1))
        for l in rdK(p, (i+2)*2560): a(l)
        for l in rdV(p ^ 1, (i+1)*2560): a(l)
        for r in range(0, 4): ex(r)
        a('s_waitcnt lgkmcnt(4)')
        a(mfS1(p ^ 1))
        for r in range(4, 8): ex(r)
        cv(0); cv(1); cv(2); cv(3)
        a(mfPV(p, 0))
        for r in range(8, 12): ex(r)
        a(mfS2(p ^ 1))
        for r in range(12, 16): ex(r)
        if i == UNR-1:
            for v in (AK, AB, AV): a(f'v_add_u32 v{v}, {UNR*2560}, v{v}')
        cv(4); cv(5); cv(6); cv(7)
    a(f's_add_u32 s{sK}, s{sK}, 1')
    a(f's_cmp_lt_u32 s{sK}, {64//UNR}')
    a(f's_cbranch_scc1 {Lloop}')
    a(mfPV(1, 1))
    a('s_waitcnt lgkmcnt(0)')
    a(f'v_mov_b32 v60, v{O+8}')
    a(f'v_mov_b32 v61, v{O+8}')
    a('v_permlane32_swap_b32 v60, v61')
    a(f'v_mul_f32 v62, 0, v{O}')
    for i in range(1, 12): a(f'v_fmac_f32 v62, 0, v{O+i}')
    a(f'v_cmp_u_f32 vcc, v62, v62')
    a(f's_mov_b64 s[46:47], vcc')
    a(f'v_mov_b32 v63, {f32hex(2.0**40)}')
    a(f'v_cmp_nlt_f32 vcc, v61, v63')
    a(f's_or_b64 s[46:47], s[46:47], vcc')
    a(f's_cmp_lg_u32 s{sPass}, 0')
    a(f's_cbranch_scc1 {Lfin}')
    a(f's_cmp_eq_u64 s[46:47], 0')
    a(f's_cbranch_scc1 {Lfin}')
    a(f's_mov_b32 s{sPass}, 1')
    a(f's_mov_b32 s{sN}, 64')
    a(f's_branch {Lscan}')
    a.label(Lfin)
    a('v_rcp_f32 v61, v61')
    for i in range(12): a(f'v_mul_f32 v{O+i}, v{O+i}, v61')
    for gg in range(3):
        a(f'v_cvt_pk_bf16_f32 v{P+2*gg}, v{O+4*gg}, v{O+4*gg+1}')
        a(f'v_cvt_pk_bf16_f32 v{P+2*gg+1}, v{O+4*gg+2}, v{O+4*gg+3}')
    a(f'v_and_b32 v60, 31, v{vL}')
    a(f'v_lshrrev_b32 v61, 5, v{vL}')
    a(f's_lshl_b32 s{sT}, s{sQT}, 1')
    a(f'v_lshrrev_b32 v62, 4, v60')
    a(f'v_add_u32 v62, s{sT}, v62')
    a(f'v_mul_u32_u24 v62, 20, v62')
    a(f'v_and_b32 v60, 15, v60')
    a(f's_mul_i32 s{sT}, s{sHead}, 20')
    for gg in range(3):
        a(f's_add_u32 s{sT2}, s{sT}, {8*gg}')
        a(f'v_lshl_add_u32 v63, v61, 2, s{sT2}')
        a(f'v_lshrrev_b32 v64, 5, v63')
        a(f'v_add_u32 v64, v64, v62')
        a(f'v_lshlrev_b32 v64, 6, v64')
        a(f'v_bfe_u32 v65, v63, 3, 2')
        a(f'v_lshl_add_u32 v64, v65, 4, v64')
        a(f'v_add_u32 v64, v64, v60')
        a(f'v_lshlrev_b32 v64, 4, v64')
        a(f'v_and_b32 v65, 7, v63')
        a(f'v_lshl_add_u32 v{66+gg}, v65, 1, v64')
    a(f's_mov_b32 s{sT}, {WS_O}')
    a(f'buffer_store_dwordx2 v[{P}:{P+1}], v66, s[{SWS}:{SWS+3}], s{sT} offen{SC}')
    a(f'buffer_store_dwordx2 v[{P+2}:{P+3}], v67, s[{SWS}:{SWS+3}], s{sT} offen{SC}')
    a(f's_mov_b64 exec, s[{sLo}:{sLo+1}]')
    a(f'buffer_store_dwordx2 v[{P+4}:{P+5}], v68, s[{SWS}:{SWS+3}], s{sT} offen{SC}')
    a('s_mov_b64 exec, -1')
    mstamp(g, 6)
    a('s_waitcnt vmcnt(0)')
    a(f's_add_u32 s{sT}, s{sQT}, {C2}')
    arrive(g, sT, 60)
    Lnpack = g.lab('npack')
    a(f's_cmp_ge_u32 s{sW}, 4')
    a(f's_cbranch_scc1 {Lnpack}')
    sW4 = 45
    a(f's_lshl_b32 s{sW4}, s2, 2')
    a(f's_add_u32 s{sW4}, s{sW4}, s{sW}')
    SD = 68; SG, SU = 72, 76
    srd(a, SD, P_WD, 1536*640*2)
    srd(a, SG, P_WG, 640*1536*2)
    srd(a, SU, P_WU, 640*1536*2)
    sDT, sDK, sDo, sDt = 60, 61, 62, 63
    vD16 = 8; vDd = 10
    Lnd = g.lab('nowd')
    a(f's_cmp_ge_u32 s{sW4}, 768')
    a(f's_cbranch_scc1 {Lnd}')
    sdiv(a, sDT, sW4, 48, sDt)
    a(f's_mul_i32 s{sDK}, s{sDT}, 48')
    a(f's_sub_u32 s{sDK}, s{sW4}, s{sDK}')
    a(f'v_and_b32 v{vD16}, 15, v{vL}')
    a(f'v_lshrrev_b32 v{vD16+1}, 4, v{vL}')
    a(f's_movk_i32 s{sDt}, {8*1280}')
    a(f'v_mul_lo_u32 v{vD16+1}, v{vD16+1}, s{sDt}')
    a(f'v_lshl_add_u32 v{vD16}, v{vD16}, 1, v{vD16+1}')
    a(f's_mul_i32 s64, s{sDK}, {32*1280}')
    a(f's_mul_i32 s{sDt}, s{sDT}, 80')
    a(f's_add_u32 s64, s64, s{sDt}')
    for nt in range(3):
        if nt == 2:
            a('s_mov_b32 exec_lo, 0x00ff00ff')
            a('s_mov_b32 exec_hi, 0x00ff00ff')
        a(f's_add_u32 s{sDo}, s64, {nt*32}')
        for j in range(8):
            op = 'buffer_load_short_d16_hi' if j & 1 else 'buffer_load_short_d16'
            a(f'{op} v{vDd + 8*nt + j//2 + 4*(j&1)}, v{vD16}, s[{SD}:{SD+3}], s{sDo} offen')
            if j < 7: a(f's_add_u32 s{sDo}, s{sDo}, 1280')
    a('s_mov_b64 exec, -1')
    a.label(Lnd)
    v32 = 36
    a(f'v_and_b32 v{v32}, 15, v{vL}')
    a(f'v_lshrrev_b32 v{v32+1}, 5, v{vL}')
    a(f's_movk_i32 s{sDt}, {8*3072}')
    a(f'v_mul_lo_u32 v{v32+1}, v{v32+1}, s{sDt}')
    a(f'v_lshl_add_u32 v{v32}, v{v32}, 1, v{v32+1}')
    U = []
    for un in range(2):
        sU, sTC, sKP, sTt, sCt = [46 + 5*un + i for i in range(5)]
        so, sd, st = 56, 57, 58
        vd = 40 + 16*un
        U.append((sU, sTC, sKP, sTt, sCt, vd))
        Lsk = g.lab('nogu')
        a(f's_add_u32 s{sU}, s{sW4}, {1024*un}')
        a(f's_cmp_ge_u32 s{sU}, 1920')
        a(f's_cbranch_scc1 {Lsk}')
        sdiv(a, sTC, sU, 20, st)
        a(f's_mul_i32 s{sKP}, s{sTC}, 20')
        a(f's_sub_u32 s{sKP}, s{sU}, s{sKP}')
        sdiv(a, sTt, sTC, 3, st)
        a(f's_mul_i32 s{sCt}, s{sTt}, 3')
        a(f's_sub_u32 s{sCt}, s{sTC}, s{sCt}')
        a(f's_mul_i32 s59, s{sKP}, {2*16*3072}')
        a(f's_lshl_b32 s{sd}, s{sTC}, 5')
        a(f's_add_u32 s59, s59, s{sd}')
        for (mlo, SRC) in ((0x0000ffff, SG), (0xffff0000, SU)):
            a(f's_mov_b32 exec_lo, {mlo}')
            a(f's_mov_b32 exec_hi, {mlo}')
            a(f's_mov_b32 s{so}, s59')
            for i in range(2):
                reg = vd + 8*i
                for j in range(8):
                    op = 'buffer_load_short_d16_hi' if j & 1 else 'buffer_load_short_d16'
                    a(f'{op} v{reg + j//2 + 4*(j&1)}, v{v32}, s[{SRC}:{SRC+3}], s{so} offen')
                    a(f's_add_u32 s{so}, s{so}, 3072' if j < 7 else f's_add_u32 s{so}, s{so}, {3072*9}')
        a('s_mov_b64 exec, -1')
        a.label(Lsk)
    a('s_waitcnt vmcnt(0)')
    Ln = g.lab('nowd2')
    a(f's_cmp_ge_u32 s{sW4}, 768')
    a(f's_cbranch_scc1 {Ln}')
    a(f's_mul_i32 s{sDo}, s{sW4}, 2560')
    a(f's_add_u32 s{sDo}, s{sDo}, {WS_WDP}')
    for nt in range(3):
        r = vDd + 8*nt
        for q in range(4): a(f'v_or_b32 v{r+q}, v{r+q}, v{r+4+q}')
    a(f'buffer_store_dwordx4 v[{vDd}:{vDd+3}], v{vL16}, s[{SWS}:{SWS+3}], s{sDo} offen{SC}')
    a(f'buffer_store_dwordx4 v[{vDd+8}:{vDd+11}], v{vL16}, s[{SWS}:{SWS+3}], s{sDo} offen offset:1024{SC}')
    a(f'v_lshrrev_b32 v{vD16}, 4, v{vL}')
    a(f'v_and_b32 v{vD16+1}, 15, v{vL}')
    a(f'v_lshlrev_b32 v{vD16+1}, 4, v{vD16+1}')
    a(f'v_lshl_add_u32 v{vD16}, v{vD16}, 7, v{vD16+1}')
    a('s_mov_b32 exec_lo, 0x00ff00ff')
    a('s_mov_b32 exec_hi, 0x00ff00ff')
    a(f'buffer_store_dwordx4 v[{vDd+16}:{vDd+19}], v{vD16}, s[{SWS}:{SWS+3}], s{sDo} offen offset:2048{SC}')
    a('s_mov_b64 exec, -1')
    a.label(Ln)
    for (sU, sTC, sKP, sTt, sCt, vd) in U:
        so, sd, st = 56, 57, 58
        Lsk = g.lab('nogu2')
        a(f's_cmp_ge_u32 s{sU}, 1920')
        a(f's_cbranch_scc1 {Lsk}')
        a(f's_mul_i32 s{sd}, s{sTt}, 40')
        a(f's_lshl_b32 s{so}, s{sKP}, 1')
        a(f's_add_u32 s{sd}, s{sd}, s{so}')
        a(f's_mul_i32 s{sd}, s{sd}, 3')
        a(f's_add_u32 s{sd}, s{sd}, s{sCt}')
        a(f's_lshl_b32 s{sd}, s{sd}, 10')
        a(f's_add_u32 s{sd}, s{sd}, {WS_WGU}')
        a(f'v_mov_b32 v4, 0')
        a(f's_mov_b32 s{st}, 0x3f803f80')
        for i in range(2):
            reg = vd + 8*i
            for q in range(4): a(f'v_or_b32 v{reg+q}, v{reg+q}, v{reg+4+q}')
            a(f'buffer_store_dwordx4 v[{reg}:{reg+3}], v{vL16}, s[{SWS}:{SWS+3}], s{sd} offen{SC}')
            a(f's_add_u32 s{sd}, s{sd}, 3072')
            for q in range(4): a(f'v_dot2c_f32_bf16 v4, s{st}, v{reg+q}')
        a('v_mov_b32 v5, v4')
        a('v_permlane32_swap_b32 v4, v5')
        a('v_add_f32 v4, v4, v5')
        a(f'v_and_b32 v5, 31, v{vL}')
        a(f'v_mul_u32_u24 v5, 80, v5')
        a(f's_mul_i32 s{sd}, s{sTC}, {32*80}')
        a(f's_lshl_b32 s{so}, s{sKP}, 2')
        a(f's_add_u32 s{sd}, s{sd}, s{so}')
        a(f's_add_u32 s{sd}, s{sd}, {WS_CWP2}')
        a(f's_mov_b32 exec_lo, -1')
        a(f's_mov_b32 exec_hi, 0')
        a(f'buffer_store_dword v4, v5, s[{SWS}:{SWS+3}], s{sd} offen{SC}')
        a('s_mov_b64 exec, -1')
        a.label(Lsk)
    a('s_waitcnt vmcnt(0)')
    a(f's_and_b32 s{sT}, s2, 7')
    a(f's_add_u32 s{sT}, s{sT}, {CPK}')
    arrive(g, sT, 4)
    a.label(Lnpack)
    a('s_barrier')
    mstamp(g, 7)

def res_loader(g, NST, NI, dma_fn, first_wait_extra=0):
    a = g.a
    maxfl = 63 // NI
    issued = min(NST, maxfl)
    for _ in range(issued): dma_fn()
    for s_ in range(NST):
        rem = issued - 1 - s_
        a(f's_waitcnt vmcnt({rem*NI})')
        a('s_barrier')
        if issued < NST:
            dma_fn(); issued += 1

def res_loader_loop(g, NST, NI, dma_fn, sC):
    a = g.a
    maxfl = 63 // NI
    pre = min(NST, maxfl)
    l = g.lab('rl')
    a(f's_mov_b32 s{sC}, 0')
    a.label(l)
    dma_fn()
    a(f's_add_u32 s{sC}, s{sC}, 1')
    a(f's_cmp_lt_u32 s{sC}, {pre}')
    a(f's_cbranch_scc1 {l}')
    nst_steady = NST - pre
    if nst_steady:
        l = g.lab('rs')
        a(f's_mov_b32 s{sC}, 0')
        a.label(l)
        a(f's_waitcnt vmcnt({(pre-1)*NI})')
        a('s_barrier')
        dma_fn()
        a(f's_add_u32 s{sC}, s{sC}, 1')
        a(f's_cmp_lt_u32 s{sC}, {nst_steady}')
        a(f's_cbranch_scc1 {l}')
    for k in range(pre):
        a(f's_waitcnt vmcnt({(pre-1-k)*NI})')
        a('s_barrier')

def only_barriers(g, n, sC):
    a = g.a
    l = g.lab('ob')
    a(f's_mov_b32 s{sC}, 0')
    a.label(l)
    a('s_barrier')
    a(f's_add_u32 s{sC}, s{sC}, 1')
    a(f's_cmp_lt_u32 s{sC}, {n}')
    a(f's_cbranch_scc1 {l}')

def phase_wo(g):
    a = g.a
    NST = 10; XB = 102400
    sM, sTT, sT = 32, 33, 34
    sC, sSrc, sL, sIdx = 38, 40, 44, 45
    sTG, sNH, sHalf = 46, 47, 48
    SR = 52
    vRA = 3; vOA = 4; RES = 8; FR = 20; ACC = 100; vAX = 116; vAW = 117
    Lc = g.lab('wc'); Lx = g.lab('wx'); Le = g.lab('we')
    a(f's_and_b32 s{sT}, s2, 7')
    a(f's_lshr_b32 s{sT+1}, s2, 3')
    a(f's_lshl_b32 s{sM}, s{sT}, 2')
    a(f's_lshr_b32 s{sT}, s{sT+1}, 3')
    a(f's_add_u32 s{sM}, s{sM}, s{sT}')
    a(f's_and_b32 s{sTT}, s{sT+1}, 7')
    a(f's_cmp_lt_u32 s{sW}, 4')
    a(f's_cbranch_scc1 {Lc}')
    a(f's_and_b32 s{sT}, s{sW}, 1')
    a(f's_cmp_ge_u32 s{sW}, 6')
    a(f's_cbranch_scc1 {Lx}')
    a(f's_mul_i32 s{sL}, s{sT}, 5120')
    a(f's_mul_i32 s{sSrc}, s{sTT}, {20*5120}')
    a(f's_add_u32 s{sSrc}, s{sSrc}, s{sL}')
    a(f's_add_u32 s{sSrc}, s{sSrc}, {WS_WOP}')
    def dmaw():
        for i in range(5):
            a(f's_add_u32 m0, s{sL}, {i*1024}')
            a(f's_add_u32 s{sSrc+1}, s{sSrc}, {i*1024}')
            a(f'buffer_load_dwordx4 v{vL16}, s[{SWS}:{SWS+3}], s{sSrc+1} offen sc1 lds')
        a(f's_add_u32 s{sSrc}, s{sSrc}, 10240')
        a(f's_add_u32 s{sL}, s{sL}, 10240')
    res_loader_loop(g, NST, 5, dmaw, sC)
    only_barriers(g, NST + 1, sC)
    a(f's_branch {Le}')
    a.label(Lx)
    for half in range(2):
        a(f's_add_u32 s{sIdx}, s{sM}, {C2 + 32*half}')
        wait_cnt(g, sIdx, 32)
        mstamp(g, 8 + 2*half)
        a(f's_lshl_b32 s{sSrc}, s{sM}, 1')
        a(f's_add_u32 s{sSrc}, s{sSrc}, s{sT}')
        a(f's_add_u32 s{sSrc}, s{sSrc}, {64*half}')
        a(f's_mul_i32 s{sSrc}, s{sSrc}, {20*1024}')
        a(f's_add_u32 s{sSrc}, s{sSrc}, {WS_O}')
        a(f's_mul_i32 s{sL}, s{sT}, 20480')
        a(f's_add_u32 s{sL}, s{sL}, {XB}')
        def dmax():
            for k in range(2):
                a(f's_add_u32 m0, s{sL}, {k*1024}')
                a(f's_add_u32 s{sSrc+1}, s{sSrc}, {k*1024}')
                a(f'buffer_load_dwordx4 v{vL16}, s[{SWS}:{SWS+3}], s{sSrc+1} offen sc1 lds')
            a(f's_add_u32 s{sSrc}, s{sSrc}, 2048')
            a(f's_add_u32 s{sL}, s{sL}, 2048')
        res_loader_loop(g, NST, 2, dmax, sC)
        if half == 0:
            a('s_barrier')
    a(f's_branch {Le}')
    a.label(Lc)
    a(f's_and_b32 s{sTG}, s{sW}, 1')
    a(f's_lshr_b32 s{sNH}, s{sW}, 1')
    srd(a, SR, P_X, 2048*1280)
    a(f's_mul_i32 s{sT}, s{sNH}, 3072')
    a(f'v_add_u32 v{vAW}, s{sT}, v{vL16}')
    a(f's_mul_i32 s{sT}, s{sTG}, 20480')
    a(f's_add_u32 s{sT}, s{sT}, {XB}')
    a(f'v_add_u32 v{vAX}, s{sT}, v{vL16}')
    a(f's_mov_b32 s{sHalf}, 0')
    Lh = g.lab('whalf')
    a.label(Lh)
    a(f'v_and_b32 v5, 15, v{vL}')
    a(f'v_lshrrev_b32 v6, 4, v{vL}')
    a(f's_lshl_b32 s{sT}, s{sM}, 5')
    a(f's_lshl_b32 s{sT+1}, s{sTG}, 4')
    a(f's_add_u32 s{sT}, s{sT}, s{sT+1}')
    a(f's_lshl_b32 s{sT+1}, s{sHalf}, 10')
    a(f's_add_u32 s{sT}, s{sT}, s{sT+1}')
    a(f'v_add_u32 v7, s{sT}, v5')
    a(f's_movk_i32 s{sT}, 1280')
    a(f'v_mul_lo_u32 v{vOA}, v7, s{sT}')
    a(f'v_lshl_add_u32 v{vOA}, v6, 3, v{vOA}')
    a(f's_mul_i32 s{sT}, s{sTT}, 160')
    a(f's_mul_i32 s{sT+1}, s{sNH}, 96')
    a(f's_add_u32 s{sT}, s{sT}, s{sT+1}')
    a(f'v_add_u32 v{vOA}, s{sT}, v{vOA}')
    a(f'v_lshrrev_b32 v{vRA}, 5, v7')
    a(f'v_mul_u32_u24 v{vRA}, 40, v{vRA}')
    a(f's_mul_i32 s{sT}, s{sTT}, 5')
    a(f's_mul_i32 s{sT+1}, s{sNH}, 3')
    a(f's_add_u32 s{sT}, s{sT}, s{sT+1}')
    a(f'v_add_u32 v{vRA}, s{sT}, v{vRA}')
    a(f'v_lshlrev_b32 v{vRA}, 6, v{vRA}')
    a(f'v_lshrrev_b32 v5, 1, v6')
    a(f'v_lshl_add_u32 v{vRA}, v5, 5, v{vRA}')
    a(f'v_and_b32 v5, 31, v7')
    a(f'v_add_u32 v{vRA}, v{vRA}, v5')
    a(f'v_lshlrev_b32 v{vRA}, 4, v{vRA}')
    a(f'v_and_b32 v5, 1, v6')
    a(f'v_lshl_add_u32 v{vRA}, v5, 3, v{vRA}')
    a(f'v_add_u32 v{vRA}, {WS_H}, v{vRA}')
    for nt in range(3):
        a(f'buffer_load_dwordx2 v[{RES+2*nt}:{RES+2*nt+1}], v{vOA}, s[{SR}:{SR+3}], 0 offen offset:{nt*32}')
    for i in range(12): a(f'v_mov_b32 v{ACC+i}, 0')
    def reads(S, ks, st):
        f = FR + 16*st
        k = 2*S + ks
        Lr = [f'ds_read_b128 v[{f}:{f+3}], v{vAX} offset:{k*1024}']
        base = vAW if k < 12 else vAW + 1
        off = k*5120 if k < 12 else (k-12)*5120
        Lr += [f'ds_read_b128 v[{f+4+4*nt}:{f+4+4*nt+3}], v{base} offset:{off + nt*1024}' for nt in range(3)]
        return Lr
    a(f'v_add_u32 v{vAW+1}, {12*5120}, v{vAW}')
    mstamp(g, 9)
    a('s_barrier')
    for l in reads(0, 0, 0) + reads(0, 1, 1): a(l)
    for S in range(NST):
        for ks in range(2):
            st = (2*S + ks) % 4
            last = (S == NST-1)
            a('s_waitcnt lgkmcnt(4)' if not (last and ks == 1) else 's_waitcnt lgkmcnt(0)')
            if ks == 0 and not last: a('s_barrier')
            nxt = reads(S+1, ks, (st+2) % 4) if not last else []
            f = FR + 16*st
            for nt in range(3):
                d = ACC + 4*nt
                a(f'v_mfma_f32_16x16x32_bf16 v[{d}:{d+3}], v[{f+4+4*nt}:{f+4+4*nt+3}], v[{f}:{f+3}], v[{d}:{d+3}]')
                if nxt: a(nxt.pop(0))
            for l in nxt: a(l)
    a('s_waitcnt vmcnt(0)')
    T0 = FR
    vS1 = 6; vS2 = 7
    a(f'v_mov_b32 v{vS1}, 0'); a(f'v_mov_b32 v{vS2}, 0')
    Lskip = g.lab('wsk')
    for nt in range(3):
        if nt == 2:
            a(f's_cmp_lg_u32 s{sNH}, 0')
            a(f's_cbranch_scc1 {Lskip}')
        t = T0 + 8*nt
        a(f'v_lshlrev_b32 v{t}, 16, v{RES+2*nt}')
        a(f'v_and_b32 v{t+1}, 0xffff0000, v{RES+2*nt}')
        a(f'v_lshlrev_b32 v{t+2}, 16, v{RES+2*nt+1}')
        a(f'v_and_b32 v{t+3}, 0xffff0000, v{RES+2*nt+1}')
        for i in range(4): a(f'v_add_f32 v{t+i}, v{t+i}, v{ACC+4*nt+i}')
        a(f'v_cvt_pk_bf16_f32 v{t+4}, v{t}, v{t+1}')
        a(f'v_cvt_pk_bf16_f32 v{t+5}, v{t+2}, v{t+3}')
        a(f'buffer_store_dwordx2 v[{t+4}:{t+5}], v{vRA}, s[{SWS}:{SWS+3}], 0 offen offset:{nt*1024}{SC}')
        for i in range(4):
            a(f'v_add_f32 v{vS1}, v{vS1}, v{t+i}')
            a(f'v_fmac_f32 v{vS2}, v{t+i}, v{t+i}')
    a.label(Lskip)
    for v in (vS1, vS2):
        a(f'v_mov_b32 v5, v{v}')
        a(f'v_permlane32_swap_b32 v{v}, v5')
        a(f'v_add_f32 v{v}, v{v}, v5')
        a(f'v_mov_b32 v5, v{v}')
        a(f'v_permlane16_swap_b32 v{v}, v5')
        a(f'v_add_f32 v{v}, v{v}, v5')
    a(f'v_and_b32 v5, 15, v{vL}')
    a(f's_lshl_b32 s{sT}, s{sM}, 5')
    a(f's_lshl_b32 s{sT+1}, s{sTG}, 4')
    a(f's_add_u32 s{sT}, s{sT}, s{sT+1}')
    a(f's_lshl_b32 s{sT+1}, s{sHalf}, 10')
    a(f's_add_u32 s{sT}, s{sT}, s{sT+1}')
    a(f'v_add_u32 v5, s{sT}, v5')
    a(f'v_lshlrev_b32 v5, 7, v5')
    a(f's_lshl_b32 s{sT}, s{sTT}, 4')
    a(f's_lshl_b32 s{sT+1}, s{sNH}, 3')
    a(f's_add_u32 s{sT}, s{sT}, s{sT+1}')
    a(f's_add_u32 s{sT}, s{sT}, {WS_ST2}')
    a(f's_mov_b64 exec, 0xffff')
    a(f'buffer_store_dwordx2 v[{vS1}:{vS2}], v5, s[{SWS}:{SWS+3}], s{sT} offen{SC}')
    a(f's_mov_b64 exec, -1')
    a('s_waitcnt vmcnt(0)')
    a('s_barrier')
    Lnp = g.lab('wnp')
    a(f's_cmp_lg_u32 s{sW}, 0')
    a(f's_cbranch_scc1 {Lnp}')
    a(f's_lshr_b32 s{sT}, s{sM}, 2')
    a(f's_lshl_b32 s{sT+1}, s{sHalf}, 3')
    a(f's_add_u32 s{sT}, s{sT}, s{sT+1}')
    a(f's_add_u32 s{sT}, s{sT}, {C3}')
    arrive(g, sT, 20)
    a.label(Lnp)
    mstamp(g, 11)
    a(f's_add_u32 s{sHalf}, s{sHalf}, 1')
    a(f's_cmp_lt_u32 s{sHalf}, 2')
    a(f's_cbranch_scc1 {Lh}')
    a(f's_branch L_p3_done')
    a.label(Le)
    a('s_barrier')
    a.label('L_p3_done')

def phase_gu(g):
    a = g.a
    NST = 20; SCR = 122880
    sM, sTT, sT = 32, 33, 34
    sC, sSrc, sL, sIdx = 38, 40, 44, 45
    sHalf, sSO, sXs = 52, 57, 58
    vAW = 10; ACC = 64; CW = 16; WF = 112; XR = 160; TMP = 224
    XD = 16
    vA = 4; vB = 6; vO = 8; vH = 3
    Lc = g.lab('gc'); Lx = g.lab('gx')
    a(f's_and_b32 s{sT}, s2, 7')
    a(f's_lshr_b32 s{sT+1}, s2, 3')
    a(f's_lshr_b32 s{sM}, s{sT}, 2')
    a(f's_lshl_b32 s{sM}, s{sM}, 2')
    a(f's_lshr_b32 s{sTT}, s{sT+1}, 3')
    a(f's_add_u32 s{sM}, s{sM}, s{sTT}')
    a(f's_and_b32 s{sTT}, s{sT}, 3')
    a(f's_lshl_b32 s{sTT}, s{sTT}, 3')
    a(f's_and_b32 s{sT+1}, s{sT+1}, 7')
    a(f's_add_u32 s{sTT}, s{sTT}, s{sT+1}')
    a(f's_cmp_lt_u32 s{sW}, 4')
    a(f's_cbranch_scc1 {Lc}')
    a(f's_and_b32 s{sT}, s{sW}, 1')
    a(f's_cmp_ge_u32 s{sW}, 6')
    a(f's_cbranch_scc1 {Lx}')
    a(f's_movk_i32 s{sIdx}, {CPK}')
    wait_cnt(g, sIdx, 128, n=8)
    mstamp(g, 26)
    a(f's_mul_i32 s{sL}, s{sT}, 3072')
    a(f's_mul_i32 s{sSrc}, s{sTT}, {40*3072}')
    a(f's_add_u32 s{sSrc}, s{sSrc}, s{sL}')
    a(f's_add_u32 s{sSrc}, s{sSrc}, {WS_WGU}')
    def dmaw():
        for i in range(3):
            a(f's_add_u32 m0, s{sL}, {i*1024}')
            a(f's_add_u32 s{sSrc+1}, s{sSrc}, {i*1024}')
            a(f'buffer_load_dwordx4 v{vL16}, s[{SWS}:{SWS+3}], s{sSrc+1} offen sc1 lds')
        a(f's_add_u32 s{sSrc}, s{sSrc}, 6144')
        a(f's_add_u32 s{sL}, s{sL}, 6144')
    for _ in range(3): dmaw()
    a('s_barrier')
    for _ in range(3): dmaw()
    issued = 6
    for k in range(NST):
        a(f's_waitcnt vmcnt({(issued-1-k)*3})')
        a('s_barrier')
        n = min(2, NST - issued)
        for _ in range(n): dmaw()
        issued += n
    only_barriers(g, 3, sC)
    a(f's_branch L_p4_done')
    a.label(Lx)
    Lp7 = g.lab('gp7')
    a(f's_cmp_lg_u32 s{sT}, 0')
    a(f's_cbranch_scc1 {Lp7}')
    a(f's_add_u32 s{sIdx}, s{sM}, {C3}')
    wait_cnt(g, sIdx, 32)
    mstamp(g, 12)
    a('s_barrier')
    a(f's_add_u32 s{sIdx}, s{sM}, {C3 + 8}')
    only_barriers(g, NST, sC)
    wait_cnt(g, sIdx, 32)
    mstamp(g, 14)
    only_barriers(g, 3, sC)
    a(f's_branch L_p4_done')
    a.label(Lp7)
    only_barriers(g, NST + 4, sC)
    a(f's_branch L_p4_done')
    a.label(Lc)
    a(f'v_lshrrev_b32 v{vH}, 5, v{vL}')
    a(f'v_and_b32 v7, 31, v{vL}')
    a(f'v_mov_b32 v{vAW}, v{vL16}')
    a(f'v_add_u32 v{vAW+1}, {20*3072}, v{vL16}')
    def xsrc(half):
        a(f's_lshl_b32 s{sXs}, s{sM}, 2')
        a(f's_add_u32 s{sXs}, s{sXs}, s{sW}')
        a(f's_add_u32 s{sXs}, s{sXs}, {32*half}')
        a(f's_mov_b32 s{sT+2}, s{sXs}')
        a(f's_mul_i32 s{sXs}, s{sXs}, {40*1024}')
        a(f's_add_u32 s{sXs}, s{sXs}, {WS_H}')
    def xload(k):
        r = XR + 4*(k % XD)
        o = (k % 4)*1024
        L_ = []
        if k % 4 == 0 and k > 0: L_.append(f's_add_u32 s{sXs}, s{sXs}, 4096')
        L_.append(f'buffer_load_dwordx4 v[{r}:{r+3}], v{vL16}, s[{SWS}:{SWS+3}], s{sXs} offen offset:{o}{SC}')
        return L_
    def stats_loads():
        a(f'v_lshlrev_b32 v5, 7, v7')
        a(f'v_lshl_add_u32 v5, v{vH}, 6, v5')
        a(f's_lshl_b32 s{sT}, s{sT+2}, 12')
        a(f's_add_u32 s{sT}, s{sT}, {WS_ST2}')
        for q in range(4):
            a(f'buffer_load_dwordx4 v[{TMP+4*q}:{TMP+4*q+3}], v5, s[{SWS}:{SWS+3}], s{sT} offen offset:{16*q}{SC}')
    def reads(k, st):
        f = WF + 12*st
        base = vAW if k < 20 else vAW + 1
        off = k*3072 if k < 20 else (k-20)*3072
        return [f'ds_read_b128 v[{f+4*c}:{f+4*c+3}], v{base} offset:{off + c*1024}' for c in range(3)]
    def main(half):
        for l in reads(0, 0) + reads(1, 1): a(l)
        for k in range(40):
            st = k % 4
            if half == 0 and k % 2 == 0 and k > 0 or False:
                pass
            a(f's_waitcnt lgkmcnt({3 if k < 39 else 0})')
            if half == 0 and k % 2 == 0 and k + 2 < 40:
                a('s_barrier')
            newer = min(39, k + XD - 1) - k
            a(f's_waitcnt vmcnt({newer})')
            nxt = reads(k+2, (st+2) % 4) if k + 2 < 40 else []
            f = WF + 12*st; x = XR + 4*(k % XD)
            for c in range(3):
                d = ACC + 16*c
                a(f'v_mfma_f32_32x32x16_bf16 v[{d}:{d+15}], v[{f+4*c}:{f+4*c+3}], v[{x}:{x+3}], v[{d}:{d+15}]')
                if nxt: a(nxt.pop(0))
            if k + XD < 40:
                for l in xload(k + XD): a(l)
            if half == 0 and k == 19:
                Lm = g.lab('gmid')
                a(f's_cmp_ge_u32 s{sW}, 3')
                a(f's_cbranch_scc1 {Lm}')
                for i in range(1, 10): a(f'v_add_f32 v{TMP+16}, v{TMP+16}, v{TMP+16+i}')
                a(f'v_mov_b32 v5, v{TMP+16}')
                a(f'v_permlane32_swap_b32 v{TMP+16}, v5')
                a(f'v_add_f32 v{TMP+16}, v{TMP+16}, v5')
                a(f's_lshl_b32 s{sT}, s{sW}, 7')
                a(f's_add_u32 s{sT}, s{sT}, {SCR}')
                a(f'v_lshl_add_u32 v5, v7, 2, s{sT}')
                a(f'ds_write_b32 v5, v{TMP+16}')
                a.label(Lm)
                a('s_waitcnt lgkmcnt(0)')
    def stats_fin():
        t = TMP
        for q in range(1, 8):
            a(f'v_add_f32 v{t}, v{t}, v{t+2*q}')
            a(f'v_add_f32 v{t+1}, v{t+1}, v{t+2*q+1}')
        for r in (t, t+1):
            a(f'v_mov_b32 v5, v{r}')
            a(f'v_permlane32_swap_b32 v{r}, v5')
            a(f'v_add_f32 v{r}, v{r}, v5')
        a(f'v_mul_f32 v5, {f32hex(1/640)}, v{t}')
        a(f'v_mul_f32 v13, {f32hex(1/640)}, v{t+1}')
        a(f'v_fma_f32 v13, -v5, v5, v13')
        a(f'v_max_f32 v13, 0, v13')
        a(f'v_add_f32 v13, {f32hex(1e-5)}, v13')
        a(f'v_rsq_f32 v{vA}, v13')
        a(f'v_mul_f32 v{vB}, v5, v{vA}')
        a(f'v_sub_f32 v{vB}, 0, v{vB}')
    c1 = -2.0 * math.sqrt(2.0/math.pi) * 1.4426950408889634
    c2 = c1 * 0.044715
    def outaddr(smt32):
        a(f's_lshl_b32 s{sT}, s{smt32}, 1')
        a(f'v_lshrrev_b32 v5, 4, v7')
        a(f'v_add_u32 v5, s{sT}, v5')
        a(f'v_mul_u32_u24 v5, {48*1024}, v5')
        a(f'v_and_b32 v13, 15, v7')
        a(f'v_lshl_add_u32 v5, v13, 4, v5')
        a(f'v_lshl_add_u32 v5, v{vH}, 3, v5')
        a(f'v_add_u32 v{vO}, {WS_ACT}, v5')
    def epilogue():
        K1, K2, K0 = 112, 114, 116
        for r, val in ((K1, f32hex(c1)), (K2, f32hex(c2)), (K0, '1.0')):
            a(f'v_mov_b32 v{r}, {val}'); a(f'v_mov_b32 v{r+1}, {val}')
        TT = 120
        pr = lambda r: f'v[{r}:{r+1}]'
        BC = 'op_sel_hi:[1,0]'
        n = 0
        for c in range(3):
            cw = CW + 16*c
            a(f's_mul_i32 s{sT}, s{sTT}, 3')
            a(f's_add_u32 s{sT}, s{sT}, {c}')
            a(f's_lshl_b32 s{sSO}, s{sT}, 9')
            d = ACC + c*16
            for gg in range(2):
                t = TT + (n & 1)*20; n += 1
                X = t; U = t+4; Z = t+8; Y = t+12; PK = t+16
                A = pr(vA); B = pr(vB)
                for q in range(2): a(f'v_pk_mul_f32 {pr(X+2*q)}, {pr(cw+4*gg+2*q)}, {B} {BC}')
                for q in range(2): a(f'v_pk_mul_f32 {pr(U+2*q)}, {pr(cw+8+4*gg+2*q)}, {B} {BC}')
                for q in range(2): a(f'v_pk_fma_f32 {pr(X+2*q)}, {pr(d+4*gg+2*q)}, {A}, {pr(X+2*q)} op_sel_hi:[1,0,1]')
                for q in range(2): a(f'v_pk_fma_f32 {pr(U+2*q)}, {pr(d+8+4*gg+2*q)}, {A}, {pr(U+2*q)} op_sel_hi:[1,0,1]')
                for q in range(2): a(f'v_pk_mul_f32 {pr(Z+2*q)}, {pr(X+2*q)}, {pr(X+2*q)}')
                for q in range(2): a(f'v_pk_fma_f32 {pr(Z+2*q)}, {pr(Z+2*q)}, {pr(K2)}, {pr(K1)}')
                for q in range(2): a(f'v_pk_mul_f32 {pr(Z+2*q)}, {pr(Z+2*q)}, {pr(X+2*q)}')
                for i in range(4): a(f'v_exp_f32 v{Z+i}, v{Z+i}')
                for q in range(2): a(f'v_pk_mul_f32 {pr(Y+2*q)}, {pr(X+2*q)}, {pr(U+2*q)}')
                for q in range(2): a(f'v_pk_add_f32 {pr(Z+2*q)}, {pr(Z+2*q)}, {pr(K0)}')
                for i in range(4): a(f'v_rcp_f32 v{Z+i}, v{Z+i}')
                for q in range(2): a(f'v_pk_mul_f32 {pr(Y+2*q)}, {pr(Y+2*q)}, {pr(Z+2*q)}')
                a(f'v_cvt_pk_bf16_f32 v{PK}, v{Y}, v{Y+1}')
                a(f'v_cvt_pk_bf16_f32 v{PK+1}, v{Y+2}, v{Y+3}')
                a(f'buffer_store_dwordx2 v[{PK}:{PK+1}], v{vO}, s[{SWS}:{SWS+3}], s{sSO} offen offset:{gg*256}{SC}')
    def publish4(half):
        Lnp = g.lab('gnp')
        a(f's_cmp_lg_u32 s{sW}, 0')
        a(f's_cbranch_scc1 {Lnp}')
        a(f's_add_u32 s{sT}, s{sM}, {C4 + 8*half}')
        arrive(g, sT, 120)
        a.label(Lnp)
    for i in range(48): a(f'v_mov_b32 v{ACC+i}, 0')
    xsrc(0)
    mstamp(g, 13)
    a('s_barrier')
    Lncw = g.lab('gncw')
    a(f's_cmp_ge_u32 s{sW}, 3')
    a(f's_cbranch_scc1 {Lncw}')
    a(f's_mul_i32 s{sT}, s{sTT}, 3')
    a(f's_add_u32 s{sT}, s{sT}, s{sW}')
    a(f's_mul_i32 s{sT}, s{sT}, {32*80}')
    a(f's_add_u32 s{sT}, s{sT}, {WS_CWP2}')
    a(f'v_mul_u32_u24 v5, 80, v7')
    a(f'v_mul_u32_u24 v13, 40, v{vH}')
    a(f'v_add_u32 v5, v5, v13')
    a(f'buffer_load_dwordx4 v[{TMP+16}:{TMP+19}], v5, s[{SWS}:{SWS+3}], s{sT} offen{SC}')
    a(f'buffer_load_dwordx4 v[{TMP+20}:{TMP+23}], v5, s[{SWS}:{SWS+3}], s{sT} offen offset:16{SC}')
    a(f'buffer_load_dwordx2 v[{TMP+24}:{TMP+25}], v5, s[{SWS}:{SWS+3}], s{sT} offen offset:32{SC}')
    a.label(Lncw)
    stats_loads()
    outaddr(sT+2)
    for k in range(XD):
        for l in xload(k): a(l)
    a('s_barrier')
    mstamp(g, 21)
    main(0)
    mstamp(g, 22)
    stats_fin()
    a(f'v_lshlrev_b32 v5, 4, v{vH}')
    a(f'v_add_u32 v5, {SCR}, v5')
    for c in range(3):
        for gg in range(4):
            a(f'ds_read_b128 v[{CW+c*16+gg*4}:{CW+c*16+gg*4+3}], v5 offset:{c*128 + gg*32}')
    a('s_barrier')
    a(f's_mov_b32 s{sHalf}, s{sT+2}')
    xsrc(1)
    stats_loads()
    for k in range(XD):
        for l in xload(k): a(l)
    a('s_waitcnt lgkmcnt(0)')
    mstamp(g, 23)
    epilogue()
    mstamp(g, 24)
    a('s_waitcnt vmcnt(0)')
    a('s_barrier')
    publish4(0)
    mstamp(g, 15)
    outaddr(sT+2)
    for i in range(48): a(f'v_mov_b32 v{ACC+i}, 0')
    stats_fin()
    main(1)
    mstamp(g, 25)
    epilogue()
    a('s_waitcnt vmcnt(0)')
    a('s_barrier')
    publish4(1)
    mstamp(g, 11)
    a.label('L_p4_done')

def phase_down(g):
    a = g.a
    NST = 24
    sM, sTT, sT = 32, 33, 34
    sC, sSrc, sL, sIdx = 38, 40, 44, 45
    sXs = 58; SO = 60
    vOA = 4; RES = 8; WF = 20; ACC = 68; vAW = 80; vAH = 82; vRA = 84; XR = 96; XD = 24
    Lc = g.lab('dc'); Lx = g.lab('dx')
    a(f's_and_b32 s{sT}, s2, 7')
    a(f's_lshr_b32 s{sT+1}, s2, 3')
    a(f's_lshr_b32 s{sM}, s{sT}, 1')
    a(f's_lshl_b32 s{sM}, s{sM}, 2')
    a(f's_lshr_b32 s{sTT}, s{sT+1}, 3')
    a(f's_add_u32 s{sM}, s{sM}, s{sTT}')
    a(f's_and_b32 s{sTT}, s{sT}, 1')
    a(f's_lshl_b32 s{sTT}, s{sTT}, 3')
    a(f's_and_b32 s{sT+1}, s{sT+1}, 7')
    a(f's_add_u32 s{sTT}, s{sTT}, s{sT+1}')
    a(f's_cmp_lt_u32 s{sW}, 4')
    a(f's_cbranch_scc1 {Lc}')
    a(f's_and_b32 s{sT}, s{sW}, 1')
    a(f's_cmp_ge_u32 s{sW}, 6')
    a(f's_cbranch_scc1 {Lx}')
    a(f's_mul_i32 s{sL}, s{sT}, 2048')
    a(f's_mul_i32 s{sSrc}, s{sTT}, {48*2560}')
    a(f's_add_u32 s{sSrc}, s{sSrc}, s{sL}')
    a(f's_add_u32 s{sSrc}, s{sSrc}, {WS_WDP}')
    def dmaw():
        for i in range(3):
            a(f's_add_u32 m0, s{sL}, {i*1024}')
            a(f's_add_u32 s{sSrc+1}, s{sSrc}, {i*1024}')
            a(f'buffer_load_dwordx4 v{vL16}, s[{SWS}:{SWS+3}], s{sSrc+1} offen sc1 lds')
        a(f's_add_u32 s{sSrc}, s{sSrc}, 5120')
        a(f's_add_u32 s{sL}, s{sL}, 5120')
    for _ in range(3): dmaw()
    a('s_barrier')
    for _ in range(3): dmaw()
    issued = 6
    for k in range(NST):
        a(f's_waitcnt vmcnt({(issued-1-k)*3})')
        a('s_barrier')
        n = min(2, NST - issued)
        for _ in range(n): dmaw()
        issued += n
    a('s_barrier')
    a(f's_branch L_p5_done')
    a.label(Lx)
    Lp7 = g.lab('dp7')
    a(f's_cmp_lg_u32 s{sT}, 0')
    a(f's_cbranch_scc1 {Lp7}')
    a(f's_lshr_b32 s{sIdx}, s{sM}, 1')
    a(f's_add_u32 s{sIdx}, s{sIdx}, {C4}')
    wait_cnt(g, sIdx, 32)
    mstamp(g, 16)
    a('s_barrier')
    only_barriers(g, NST, sC)
    a(f's_lshr_b32 s{sIdx}, s{sM}, 1')
    a(f's_add_u32 s{sIdx}, s{sIdx}, {C4 + 8}')
    wait_cnt(g, sIdx, 32)
    mstamp(g, 18)
    a('s_barrier')
    a(f's_branch L_p5_done')
    a.label(Lp7)
    only_barriers(g, NST + 2, sC)
    a(f's_branch L_p5_done')
    a.label(Lc)
    srd(a, SO, P_OUT, 2048*1280)
    a(f'v_mov_b32 v{vAW}, v{vL16}')
    a(f'v_add_u32 v{vAW+1}, {24*2560}, v{vL16}')
    a(f'v_lshrrev_b32 v5, 4, v{vL}')
    a(f'v_and_b32 v6, 7, v{vL}')
    a(f'v_lshlrev_b32 v6, 4, v6')
    a(f'v_lshl_add_u32 v5, v5, 7, v6')
    a(f'v_add_u32 v{vAH}, 2048, v5')
    a(f'v_add_u32 v{vAH+1}, {24*2560 + 2048}, v5')
    def addrs(half, oa, ra):
        a(f'v_and_b32 v5, 15, v{vL}')
        a(f'v_lshrrev_b32 v6, 4, v{vL}')
        a(f's_lshl_b32 s{sT}, s{sM}, 6')
        a(f's_lshl_b32 s{sT+1}, s{sW}, 4')
        a(f's_add_u32 s{sT}, s{sT}, s{sT+1}')
        a(f's_add_u32 s{sT}, s{sT}, {1024*half}')
        a(f'v_add_u32 v7, s{sT}, v5')
        a(f's_movk_i32 s{sT}, 1280')
        a(f'v_mul_lo_u32 v{oa}, v7, s{sT}')
        a(f'v_lshl_add_u32 v{oa}, v6, 3, v{oa}')
        a(f's_mul_i32 s{sT}, s{sTT}, 80')
        a(f'v_add_u32 v{oa}, s{sT}, v{oa}')
        for nt in range(3):
            a(f's_mul_i32 s{sT}, s{sTT}, 40')
            a(f's_add_u32 s{sT}, s{sT}, {16*nt}')
            a(f'v_lshl_add_u32 v14, v6, 2, s{sT}')
            a(f'v_lshrrev_b32 v15, 5, v7')
            a(f'v_mul_u32_u24 v15, 40, v15')
            a(f'v_lshrrev_b32 v16, 4, v14')
            a(f'v_add_u32 v15, v15, v16')
            a(f'v_lshlrev_b32 v15, 6, v15')
            a(f'v_bfe_u32 v16, v14, 3, 1')
            a(f'v_lshl_add_u32 v15, v16, 5, v15')
            a(f'v_and_b32 v16, 31, v7')
            a(f'v_add_u32 v15, v15, v16')
            a(f'v_lshlrev_b32 v15, 4, v15')
            a(f'v_and_b32 v16, 7, v14')
            a(f'v_lshl_add_u32 v15, v16, 1, v15')
            a(f'v_add_u32 v{ra+nt}, {WS_H}, v15')
    def xsrc(half):
        a(f's_lshl_b32 s{sXs}, s{sM}, 2')
        a(f's_add_u32 s{sXs}, s{sXs}, s{sW}')
        a(f's_add_u32 s{sXs}, s{sXs}, {64*half}')
        a(f's_mul_i32 s{sXs}, s{sXs}, {48*1024}')
        a(f's_add_u32 s{sXs}, s{sXs}, {WS_ACT}')
    def xload(k):
        r = XR + 4*(k % XD)
        o = (k % 4)*1024
        L_ = []
        if k % 4 == 0 and k > 0: L_.append(f's_add_u32 s{sXs}, s{sXs}, 4096')
        L_.append(f'buffer_load_dwordx4 v[{r}:{r+3}], v{vL16}, s[{SWS}:{SWS+3}], s{sXs} offen offset:{o}{SC}')
        return L_
    def reads(k, st):
        f = WF + 12*st
        hi = 0 if k < 24 else 1
        off = (k - 24*hi)*2560
        Lr = [f'ds_read_b128 v[{f+4*nt}:{f+4*nt+3}], v{vAW+hi} offset:{off + nt*1024}' for nt in range(2)]
        Lr += [f'ds_read_b128 v[{f+8}:{f+11}], v{vAH+hi} offset:{off}']
        return Lr
    def main(half):
        for l in reads(0, 0) + reads(1, 1): a(l)
        for k in range(48):
            st = k % 4
            a(f's_waitcnt lgkmcnt({3 if k < 47 else 0})')
            if half == 0 and k % 2 == 0 and k + 2 < 48:
                a('s_barrier')
            newer = min(47, k + XD - 1) - k
            a(f's_waitcnt vmcnt({newer})')
            nxt = reads(k+2, (st+2) % 4) if k + 2 < 48 else []
            f = WF + 12*st; x = XR + 4*(k % XD)
            for nt in range(3):
                d = ACC + 4*nt
                a(f'v_mfma_f32_16x16x32_bf16 v[{d}:{d+3}], v[{f+4*nt}:{f+4*nt+3}], v[{x}:{x+3}], v[{d}:{d+3}]')
                if nxt: a(nxt.pop(0))
            if k + XD < 48:
                for l in xload(k + XD): a(l)
    def epilogue(res, oa):
        T0 = WF
        for nt in range(3):
            t = T0 + 8*nt
            a(f'v_lshlrev_b32 v{t}, 16, v{res+2*nt}')
            a(f'v_and_b32 v{t+1}, 0xffff0000, v{res+2*nt}')
            a(f'v_lshlrev_b32 v{t+2}, 16, v{res+2*nt+1}')
            a(f'v_and_b32 v{t+3}, 0xffff0000, v{res+2*nt+1}')
            for i in range(4): a(f'v_add_f32 v{t+i}, v{t+i}, v{ACC+4*nt+i}')
            a(f'v_cvt_pk_bf16_f32 v{t+4}, v{t}, v{t+1}')
            a(f'v_cvt_pk_bf16_f32 v{t+5}, v{t+2}, v{t+3}')
            if nt == 2:
                a(f's_mov_b32 exec_lo, -1')
                a(f's_mov_b32 exec_hi, 0')
            a(f'buffer_store_dwordx2 v[{t+4}:{t+5}], v{oa}, s[{SO}:{SO+3}], 0 offen offset:{nt*32}')
            if nt == 2: a('s_mov_b64 exec, -1')
    RES2 = 88; vOA2 = 94
    vRA2 = 192
    addrs(0, vOA, vRA)
    addrs(1, vOA2, vRA2)
    for i in range(12): a(f'v_mov_b32 v{ACC+i}, 0')
    xsrc(0)
    mstamp(g, 17)
    a('s_barrier')
    for nt in range(3):
        a(f'buffer_load_dwordx2 v[{RES+2*nt}:{RES+2*nt+1}], v{vRA+nt}, s[{SWS}:{SWS+3}], 0 offen{SC}')
    for k in range(XD):
        for l in xload(k): a(l)
    a('s_barrier')
    mstamp(g, 28)
    main(0)
    mstamp(g, 29)
    a('s_barrier')
    mstamp(g, 30)
    xsrc(1)
    for nt in range(3):
        a(f'buffer_load_dwordx2 v[{RES2+2*nt}:{RES2+2*nt+1}], v{vRA2+nt}, s[{SWS}:{SWS+3}], 0 offen{SC}')
    for k in range(XD):
        for l in xload(k): a(l)
    epilogue(RES, vOA)
    for i in range(12): a(f'v_mov_b32 v{ACC+i}, 0')
    a('s_waitcnt vmcnt(3)')
    g.p5_after_wait = True
    main_b = True
    for l in reads(0, 0) + reads(1, 1): a(l)
    for k in range(48):
        st = k % 4
        a(f's_waitcnt lgkmcnt({3 if k < 47 else 0})')
        if k >= XD:
            newer = min(47, k + XD - 1) - k
            a(f's_waitcnt vmcnt({newer})')
        nxt = reads(k+2, (st+2) % 4) if k + 2 < 48 else []
        f = WF + 12*st; x = XR + 4*(k % XD)
        for nt in range(3):
            d = ACC + 4*nt
            a(f'v_mfma_f32_16x16x32_bf16 v[{d}:{d+3}], v[{f+4*nt}:{f+4*nt+3}], v[{x}:{x+3}], v[{d}:{d+3}]')
            if nxt: a(nxt.pop(0))
        if k + XD < 48:
            for l in xload(k + XD): a(l)
    epilogue(RES2, vOA2)
    mstamp(g, 19)
    a.label('L_p5_done')

def gen_mega(name):
    g = Gen(); a = g.a
    a('s_cmp_ge_u32 s2, 256')
    a('s_cbranch_scc1 L_mega_end')
    a('s_load_dwordx16 s[4:19], s[0:1], 0')
    a('s_load_dwordx4 s[20:23], s[0:1], 64')
    a(f'v_and_b32 v{vL}, 63, v0')
    a('v_lshrrev_b32 v3, 6, v0')
    a(f'v_lshlrev_b32 v{vL16}, 4, v{vL}')
    a(f'v_readfirstlane_b32 s{sW}, v3')
    a('s_waitcnt lgkmcnt(0)')
    srd(a, SWS, P_WS, WS_TOT)
    srd(a, SFL, P_DBG, 256)
    if PROFILE:
        srd(a, 96, P_WS, 256 << 20)
        mstamp(g, 20)
    phase_qkv(g)
    phase_attn(g)
    phase_wo(g)
    phase_gu(g)
    phase_down(g)
    a.label('L_mega_end')
    a('s_endpgm')
    return name, a.finalize(), kernel_desc(name, 256), (256, 512, 163840)

if __name__ == '__main__':
    import sys
    HDR = open('sequential_preLN__mha_block__geglu_ffn__prompt.s.ref').read().split('; Override')[0]
    name = 'sequential_preLN__mha_block__geglu_ffn__prompt_kernel'
    nm, body, desc, (gx, b, lds) = gen_mega(name)
    out = HDR + f'; @launch grid=({gx},1,1) block=({b},1,1) lds={lds}\n'
    out += '.amdgcn_target "amdgcn-amd-amdhsa--gfx950"\n.text\n' + kernel_header(nm) + body + '.section .rodata,"a"\n' + desc
    path = sys.argv[1] if len(sys.argv) > 1 else 'mega3.s'
    open(path, 'w').write(out)
    print('written', path, len(out))
```
